```python
import torch

def _softmax(x, axis=-1):
    return torch.softmax(x, dim=axis)
def _gelu(x):
    return torch.nn.functional.gelu(x, approximate="tanh")
def _silu(x):
    return torch.nn.functional.silu(x)
def _sigmoid(x):
    return torch.sigmoid(x)
def _layernorm(x, axis=-1, eps=1e-5):
    m = x.mean(dim=axis, keepdim=True)
    v = x.var(dim=axis, keepdim=True, unbiased=False)
    return (x - m) / torch.sqrt(v + eps)
def _scatter_add(tgt, idx, src, axis=0):
    return tgt.clone().index_add_(axis, idx, src)
def _segment_sum(src, seg, n):
    out = torch.zeros((n,) + src.shape[1:], dtype=src.dtype)
    return out.index_add_(0, seg, src)
def _pad(x, pw):
    flat = tuple(v for pair in reversed(pw) for v in pair)
    return torch.nn.functional.pad(x, flat)

kernel_name = 'parallel_sum__sliding_block_cached__dense_activation_squared_relu__decode'

def setup_inputs():

    _w = (lambda a: (lambda t: t.to(torch.bfloat16) if t.is_floating_point() else t)(torch.as_tensor(a)))
    def _A_setup():
        B, Sq, D = 1, 1, 576
        Hq, Hkv, Sk, Dh = 32, 16, 65536, 128
        assert Hq % Hkv == 0, (Hq, Hkv)
        return {
            "x": _w((lambda *s: torch.randn(*s, dtype=torch.bfloat16) * 0.05)(B, Sq, D)),
            "k_cache": _w((lambda *s: torch.randn(*s, dtype=torch.bfloat16) * 3.2)(B, Hkv, Sk, Dh)),
            "v_cache": _w((lambda *s: torch.randn(*s, dtype=torch.bfloat16) * 3.2)(B, Hkv, Sk, Dh)),
            "wq": _w((lambda *s: torch.randn(*s, dtype=torch.bfloat16) * 3.2)(D, Hq * Dh) * (D ** -0.5)),
            "wo": _w((lambda *s: torch.randn(*s, dtype=torch.bfloat16) * 3.2)(Hq * Dh, D) * ((Hq * Dh) ** -0.5)),
        }
    _A_in = _A_setup()

    def _B_setup():
        B, S, D, F = 1, 1, 576, 4608
        return {
            "x": _w((lambda *s: torch.randn(*s, dtype=torch.bfloat16) * 0.05)(B, S, D)),
            "w1": _w((lambda *s: torch.randn(*s, dtype=torch.bfloat16) * 0.05)(D, F)),
            "b1": _w((lambda *s: torch.randn(*s, dtype=torch.bfloat16) * 0.8)(F)),
            "w2": _w((lambda *s: torch.randn(*s, dtype=torch.bfloat16) * 0.05)(F, D)),
            "b2": _w((lambda *s: torch.randn(*s, dtype=torch.bfloat16) * 3.2)(D)),
        }
    _B_in = _B_setup()

    return {
        "A_x": _A_in["x"],
        "A_k_cache": _A_in["k_cache"],
        "A_v_cache": _A_in["v_cache"],
        "A_wq": _A_in["wq"],
        "A_wo": _A_in["wo"],
        "B_x": _B_in["x"],
        "B_w1": _B_in["w1"],
        "B_b1": _B_in["b1"],
        "B_w2": _B_in["w2"],
        "B_b2": _B_in["b2"],
    }

def reference(A_x, A_k_cache, A_v_cache, A_wq, A_wo, B_x, B_w1, B_b1, B_w2, B_b2):
    def _A_ref(x, k_cache, v_cache, wq, wo):
        B, Sq, D = x.shape
        Hq, Dh = 32, 128
        Hkv, Sk = k_cache.shape[1], k_cache.shape[2]
        W = min(4096, max(256, Sk // 4))
        rep = Hq // Hkv
        q = (lambda x, *d: x.permute(*d))((x @ wq).reshape(B, Sq, Hq, Dh), 0, 2, 1, 3)
        k = (lambda x, n, axis: torch.repeat_interleave(x, n, dim=axis))(k_cache[:, :, Sk - W:, :], rep, axis=1)
        v = (lambda x, n, axis: torch.repeat_interleave(x, n, dim=axis))(v_cache[:, :, Sk - W:, :], rep, axis=1)
        scores = torch.einsum("bhqd,bhkd->bhqk", q, k) * (Dh ** -0.5)
        p = _softmax(scores, axis=-1)
        o = torch.einsum("bhqk,bhkd->bhqd", p, v)
        return (lambda x, *d: x.permute(*d))(o, 0, 2, 1, 3).reshape(B, Sq, Hq * Dh) @ wo

    def _B_ref(x, w1, b1, w2, b2):
        h = torch.einsum("bsd,df->bsf", x, w1) + b1
        zero = torch.zeros_like(h)
        r = torch.where(h > zero, h, zero)
        h = r * r
        out = torch.einsum("bsf,fd->bsd", h, w2) + b2
        return out

    x = A_x
    xn = _layernorm(x, axis=-1)
    return x + _A_ref(xn, A_k_cache, A_v_cache, A_wq, A_wo) + _B_ref(xn, B_w1, B_b1, B_w2, B_b2)
```

```python
import sys
from asmlib import header, kernel_begin, descriptor, build, NAME

XBUF, QBUF, ZERO, HBUF, OBUF, MX = 0, 2304, 2816, 3072, 3200, 3264
CNT = 3280
(F_X, CNT_WQ, CNT_W1, CNT_K, CNT_Q, CNT_H, F_Q, CNT_M, CNT_L, CNT_O, F_H, F_O, CNT_T, F_PROG, F_W, CNT_E) = [CNT + 4*i for i in range(16)]
LW = 3392
WBUF = 3456
ACCQ = 3584
ACCH = 4608
PBUF = 5632
RED = 7680
ACCO = 8192
WQB = 16384
W1B = 34816
KB = 59392
LDS_BYTES = 124928
WS_X1 = 0x1000
WS_XH = 0x22000
WS_XS = 0x40000
WS_XI = 0x21000
WS_X2 = 0x280000
WS_X3 = 0x100000
WS_ALT = 0x400000
WS_STAMP = 0x20000000
NSTAMP = 40
SPIN_LIMIT = 1 << 20
POLL_LIMIT = 1 << 16
LOG2E = 0x3fb8aa3b
SCALE = 0x3db504f3
INV576 = 0x3ae38e39
EPS = 0x3727c5ac
NWAVES = 14

class G:
    def __init__(self, diag=False, dbg=False, D=4, rot=4, gmap="low", PV0=18, prio=1, hints=1, sleep=0, spin1=0, fast=0, so=0, nodma='', off='', IA=10, IB=14, IC=0, KE=1, ack3=1, burn=0, until=0, fastx2=1, early23=0, hint3=0, slp3=0, mw3=1, slp2=6, nr2=3, dual1=1, FB1=12):
        self.dual1 = dual1; self.FB1 = FB1
        self.mw3 = mw3; self.slp2 = slp2; self.nr2 = nr2
        self.slp3 = slp3
        self.fastx2 = fastx2; self.early23 = early23; self.hint3 = hint3
        self.burn = burn; self.until = until
        self.sleep = sleep; self.spin1 = spin1; self.fast = fast; self.IA = IA; self.IB = IB; self.IC = IC; self.KE = KE; self.ack3 = ack3; self.so = so; self.nodma = nodma; self.off = set(off.split(','))
        self.L = []; self.diag = diag or dbg; self.dbg = dbg; self.D = D; self.rot = rot; self.gmap = gmap
        self.PV0 = PV0; self.prio = prio; self.hints = hints
        self.nlab = 0; self.stamps = {}; self.vt = 'v9'
    def A(self, s):
        if self.off != {''}:
            out = []
            for line in s.split("\n"):
                if 'st' in self.off and line.startswith("global_store") and "sc1" in line: continue
                if 'ld' in self.off and line.startswith("global_load") and "sc1" in line: continue
                out.append(line)
            s = "\n".join(out)
        self.L.append(s)
    def lab(self, base):
        self.nlab += 1; return f"L_{base}_{self.nlab}"
    def stamp(self, kind, k):
        if not self.diag: return
        lst = self.stamps.setdefault(kind, [])
        j = len(lst); assert j < 10; lst.append(k)
        self.A(f"s_memrealtime s[{82+2*j}:{83+2*j}]\ns_waitcnt lgkmcnt(0)")
    def flush_stamps(self, kind, only=None, remap=None):
        if not self.diag: return
        lst = self.stamps.get(kind, [])
        A = self.A; skip = self.lab("nostamp")
        if only is not None: A(f"s_cmp_lg_u32 s30, {only}\ns_cbranch_scc1 {skip}")
        A("s_mov_b64 exec, 1\nv_mov_b32 v1, 0")
        if self.dbg:
            A(f"s_cmp_lg_u32 s2, 0\ns_cbranch_scc1 {skip}")
            rm = {0:1, 10:2, 11:3, 12:4, 2:5, 24:6, 5:7, 14:8, 15:9, 17:10, 9:11, 18:12, 19:13, 20:14, 34:15}
            if remap is None:
                for j, k in enumerate(lst):
                    if k in rm: A(f"v_mov_b32 v2, s{82+2*j}\nglobal_store_dword v1, v2, s[26:27] offset:{4*rm[k]}")
        else:
            A(f"s_add_u32 s72, s28, {WS_STAMP}\ns_addc_u32 s73, s29, 0")
            A(f"s_mul_i32 s70, s2, {NSTAMP*8}\ns_add_u32 s72, s72, s70\ns_addc_u32 s73, s73, 0")
            for j, k in enumerate(lst):
                kk = k if remap is None else remap.get(k)
                if kk is None: continue
                A(f"v_mov_b32 v2, s{82+2*j}\nv_mov_b32 v3, s{83+2*j}\nglobal_store_dwordx2 v1, v[2:3], s[72:73] offset:{8*kk}")
        A(f"{skip}:")
    def spin(self, addr, n, sleep=None):
        if self.so: return
        if sleep is None: sleep = self.sleep
        l = self.lab("spin"); d = self.lab("spun"); vt = self.vt
        one = self.spin1
        if one: self.A("s_mov_b64 exec, 1")
        self.A(f"s_mov_b32 s81, 0\n{l}:\nds_read_b32 {vt}, v1 offset:{addr}\ns_waitcnt lgkmcnt(0)\nv_readfirstlane_b32 s80, {vt}\ns_cmp_ge_u32 s80, {n}\ns_cbranch_scc1 {d}")
        if sleep: self.A(f"s_sleep {sleep}")
        self.A(f"s_add_u32 s81, s81, 1\ns_cmp_lt_u32 s81, {SPIN_LIMIT}\ns_cbranch_scc1 {l}\ns_endpgm\n{d}:")
        if one: self.A("s_mov_b64 exec, -1")
    def lds_inc(self, addr):
        vt = self.vt
        self.A(f"s_mov_b64 exec, 1\nv_mov_b32 {vt}, 1\nds_add_u32 v1, {vt} offset:{addr}\ns_mov_b64 exec, -1")
    def lds_setv(self, addr, val):
        vt = self.vt
        self.A(f"s_mov_b64 exec, 1\nv_mov_b32 {vt}, {val}\nds_write_b32 v1, {vt} offset:{addr}\ns_mov_b64 exec, -1")
    def rnd(self, dst, src):
        self.A(f"v_cvt_pk_bf16_f32 {dst}, {src}, {src}\nv_and_b32 {dst}, 0xffff0000, {dst}")
    def dpp(self, op, v, ctrl):
        self.A(f"s_nop 1\n{op}_dpp {v}, {v}, {v} {ctrl} row_mask:0xf bank_mask:0xf")
    def swap_red(self, op, v, t, which):
        self.A(f"v_mov_b32 {t}, {v}\ns_nop 1\nv_permlane{which}_swap_b32 {v}, {t}\ns_nop 0\n{op} {v}, {v}, {t}")
    def allreduce(self, op, v, t, rors=(1,2,4,8), s16=True, s32=True):
        for r in rors: self.dpp(op, v, f"row_ror:{r}")
        if s16: self.swap_red(op, v, t, 16)
        if s32: self.swap_red(op, v, t, 32)
    def allreduce2(self, op, va, vb, ta, tb, rors):
        A = self.A
        for r in rors:
            A(f"s_nop 0\n{op}_dpp {va}, {va}, {va} row_ror:{r} row_mask:0xf bank_mask:0xf\n{op}_dpp {vb}, {vb}, {vb} row_ror:{r} row_mask:0xf bank_mask:0xf")
        for which in (16, 32):
            A(f"v_mov_b32 {ta}, {va}\nv_mov_b32 {tb}, {vb}\ns_nop 0\nv_permlane{which}_swap_b32 {va}, {ta}\nv_permlane{which}_swap_b32 {vb}, {tb}\ns_nop 0\n{op} {va}, {va}, {ta}\n{op} {vb}, {vb}, {tb}")
    def tree_sum(self, regs, width):
        regs = list(regs)
        while len(regs) > 1:
            nxt = []
            for i in range(0, len(regs) - 1, 2):
                for e in range(width):
                    self.A(f"v_add_f32 v{regs[i]+e}, v{regs[i]+e}, v{regs[i+1]+e}")
                nxt.append(regs[i])
            if len(regs) % 2: nxt.append(regs[-1])
            regs = nxt
    def srd(self, d, p, n):
        self.A(f"s_mov_b32 s{d}, s{p}\ns_and_b32 s{d+1}, s{p+1}, 0xffff\ns_mov_b32 s{d+2}, {n}\ns_mov_b32 s{d+3}, 0x20000")
    def tagfix(self):
        self.A("s_add_u32 s34, s34, 1\ns_addc_u32 s35, s35, 0")
    def masks_w(self):
        A = self.A
        A("v_and_b32 v19, 15, v0\nv_bfe_u32 v18, v19, 1, 1\nv_lshlrev_b32 v18, 4, v18\nv_mov_b32 v17, 0xffff\nv_lshlrev_b32 v17, v18, v17")
        A("v_lshrrev_b32 v19, 2, v19")
        for j in range(4):
            A(f"v_cmp_eq_u32 vcc, {j}, v19\ns_nop 1\nv_cndmask_b32 v{10+j}, 0, v17, vcc")
        A("v_lshrrev_b32 v18, 4, v0\nv_and_b32 v17, 1, v0\nv_lshl_add_u32 v15, v18, 1, v17\nv_lshlrev_b32 v15, 2, v15")
    def extract_E(self, D, E0, E1):
        self.A("s_nop 7")
        self.A(f"v_add_f32_dpp {E0}, v{D+1}, v{D} row_ror:8 row_mask:0xf bank_mask:0xf")
        self.A(f"v_add_f32_dpp {E1}, v{D+3}, v{D+2} row_ror:8 row_mask:0xf bank_mask:0xf")
    def exec_n8(self):
        self.A("s_mov_b32 exec_lo, 0x00ff00ff\ns_mov_b32 exec_hi, 0x00ff00ff")
    def hint(self, base, offs, r0):
        if not self.hints: return
        A = self.A; l = self.lab("hint"); again = self.lab("hagain"); d = self.lab("hdone")
        A(f"s_mov_b32 s81, 0\n{l}:")
        for i, o in enumerate(offs):
            A(f"s_load_dword s{r0+i}, s[{base}:{base+1}], {o} glc")
        A("s_waitcnt lgkmcnt(0)")
        for i in range(len(offs)):
            A(f"s_cmp_lg_u32 s{r0+i}, s34\ns_cbranch_scc1 {again}")
        A(f"s_branch {d}\n{again}:\ns_add_u32 s81, s81, 1\ns_cmp_lt_u32 s81, {POLL_LIMIT}\ns_cbranch_scc1 {l}\n{d}:")
    def gather_begin(self, base):
        r = self.lab(base); self.A(f"s_mov_b32 s81, 0\n{r}:"); return r
    def gather_check(self, pairs, retry):
        A = self.A
        if 'chk' in self.off: return
        for n, r in enumerate(pairs):
            if n == 0: A(f"v_cmp_ne_u64 s[76:77], s[34:35], v[{r}:{r+1}]")
            else: A(f"v_cmp_ne_u64 vcc, s[34:35], v[{r}:{r+1}]\ns_or_b64 s[76:77], s[76:77], vcc")
        d = self.lab("gok")
        A(f"s_cmp_eq_u64 s[76:77], 0\ns_cbranch_scc1 {d}")
        A(f"s_add_u32 s81, s81, 1\ns_cmp_lt_u32 s81, {POLL_LIMIT}\ns_cbranch_scc1 {retry}\ns_endpgm\n{d}:")

    def gen(self):
        A = self.A
        A(header([f"grid=(256,1,1) block=({NWAVES*64},1,1) lds={LDS_BYTES}"]))
        A(kernel_begin(NAME))
        A("s_cmp_ge_u32 s2, 256\ns_cbranch_scc1 L_end")
        if self.diag:
            for r in range(84, 102): A(f"s_mov_b32 s{r}, 0")
            A("s_memrealtime s[82:83]")
        if self.until: A("s_memrealtime s[78:79]")
        A("s_load_dwordx16 s[4:19], s[0:1], 0")
        A("s_load_dwordx8 s[20:27], s[0:1], 64")
        A("s_load_dwordx2 s[28:29], s[0:1], 96")
        A("v_lshrrev_b32 v1, 6, v0\nv_and_b32 v0, 63, v0\ns_nop 0\nv_readfirstlane_b32 s30, v1")
        if self.gmap == "low": A("s_and_b32 s31, s2, 15\ns_lshr_b32 s32, s2, 4")
        else: A("s_lshr_b32 s31, s2, 4\ns_and_b32 s32, s2, 15")
        A("v_mov_b32 v1, 0\ns_and_b32 s33, s32, 3\ns_lshr_b32 s64, s32, 2")
        A("s_cmp_eq_u32 s30, 0\ns_cbranch_scc1 L_c1")
        A("s_cmp_eq_u32 s30, 1\ns_cbranch_scc1 L_c2")
        A("s_cmp_ge_u32 s30, 10\ns_cbranch_scc1 L_x")
        A("s_sub_u32 s30, s30, 2")
        self.stream()
        self.xwave()
        self.c1()
        self.c2()
        A("L_end:\ns_endpgm")
        A(descriptor(NAME, 128))
        return "\n".join(self.L) + "\n"

    def wq_setup(self, tile0_expr):
        A = self.A
        A("v_lshrrev_b32 v19, 3, v0\nv_and_b32 v18, 7, v0\nv_lshlrev_b32 v18, 4, v18")
        A("v_lshl_add_u32 v3, v19, 13, v18")
        A(f"s_mul_i32 s65, s64, {144*8192}\ns_lshl_b32 s70, s31, 9\ns_add_u32 s65, s65, s70\ns_lshl_b32 s70, s33, 7\ns_add_u32 s65, s65, s70")
    def dma(self, pat, srd, soff, ldsaddr_sreg, kind=""):
        if kind and kind in self.nodma.split(","):
            self.A(f"buffer_load_dwordx4 v[76:79], {pat}, s[{srd}:{srd+3}], {soff} offen nt"); return
        self.A(f"s_mov_b32 m0, {ldsaddr_sreg}\ns_nop 0\nbuffer_load_dwordx4 {pat}, s[{srd}:{srd+3}], {soff} offen nt lds")
    def term_setup(self):
        A = self.A
        A("v_lshrrev_b32 v19, 3, v0\nv_and_b32 v18, 7, v0\nv_lshlrev_b32 v18, 4, v18")
        A("v_mul_u32_u24 v5, 1152, v19\nv_add_u32 v5, v5, v18")
        self.srd(52, 20, 0); self.srd(56, 20, 0); self.srd(60, 12, 4096*576*2)
        A(f"s_cmp_lt_u32 s2, 252\ns_cselect_b32 s54, {4608*576*2}, 0")
        A(f"s_cmp_ge_u32 s2, 216\ns_cselect_b32 s58, s54, 0")
        A("s_lshl_b32 s72, s2, 4\ns_lshl_b32 s70, s2, 5\ns_sub_u32 s70, s70, %d" % (32*216 - 3456))
        A("s_cmp_lt_u32 s2, 216\ns_cselect_b32 s72, s72, s70")
        A("s_mul_i32 s72, s72, 1152\ns_lshl_b32 s70, s30, 7\ns_add_u32 s72, s72, s70")
        A("s_lshl_b32 s73, s31, 4\ns_add_u32 s73, s73, s32\ns_mul_i32 s73, s73, %d\ns_add_u32 s73, s73, s70" % (16*1152))
        A("s_and_b32 s71, s2, 7\ns_lshl_b32 s71, s71, 5\ns_lshr_b32 s70, s2, 3\ns_add_u32 s71, s71, s70\ns_lshl_b32 s71, s71, 6")
        A(f"s_lshl_b32 s70, s30, 17\ns_add_u32 s70, s70, s71\ns_add_u32 s70, s70, {WS_X3}")
        A("s_add_u32 s74, s28, s70\ns_addc_u32 s75, s29, 0")
        A("v_and_b32 v19, 7, v0\nv_lshlrev_b32 v14, 14, v19\nv_lshrrev_b32 v18, 4, v0\nv_lshl_add_u32 v14, v18, 4, v14")
    def ld_term(self, kind, t):
        A = self.A
        if kind == "w2":
            reg = {0:20, 1:24, 2:36, 3:40}[t]; srd = 52 if t < 2 else 56
            A(f"s_add_u32 s70, s72, {t*9216}\nbuffer_load_dwordx4 v[{reg}:{reg+3}], v5, s[{srd}:{srd+3}], s70 offen nt")
        else:
            reg = 28 + 4*t
            A(f"s_add_u32 s70, s73, {t*9216}\nbuffer_load_dwordx4 v[{reg}:{reg+3}], v5, s[60:63], s70 offen nt")

    def stream(self):
        A = self.A; D = self.D; self.vt = "v9"
        if self.diag: self.stamps["s"] = [0]
        self.wq_setup(None)
        A("s_lshl_b32 s70, s30, 17\ns_add_u32 s65, s65, s70")
        A(f"s_lshl_b32 s66, s30, 11\ns_add_u32 s66, s66, {WQB}")
        A("v_lshlrev_b32 v2, 4, v0")
        A("s_waitcnt lgkmcnt(0)")
        self.srd(44, 10, 576*4096*2)
        self.dma("v3", 44, "s65", "s66", "wq")
        A("s_add_u32 s70, s65, 65536\ns_add_u32 s66, s66, 1024")
        self.dma("v3", 44, "s70", "s66", "wq")
        A("s_load_dwordx2 s[34:35], s[28:29], 0")
        A("v_lshrrev_b32 v19, 3, v0\nv_mul_u32_u24 v4, 9216, v19\nv_and_b32 v18, 7, v0\nv_lshl_add_u32 v4, v18, 4, v4")
        A(f"s_mul_hi_u32 s66, s2, {(2**32+71)//72}\ns_mul_i32 s70, s66, 72\ns_sub_u32 s70, s2, s70\ns_min_u32 s66, s66, 2")
        A(f"s_lshl_b32 s70, s70, 7\ns_mul_i32 s71, s66, {192*9216}\ns_add_u32 s67, s70, s71")
        A(f"s_mul_i32 s70, s30, {3*8*9216}\ns_add_u32 s67, s67, s70")
        self.srd(48, 16, 0)
        A(f"s_cmp_lt_u32 s2, 216\ns_cselect_b32 s50, {576*4608*2}, 0")
        A(f"s_mul_i32 s66, s30, 3072\ns_add_u32 s66, s66, {W1B}")
        self.srd(36, 6, 268435456); self.srd(40, 8, 268435456)
        A(f"s_lshl_b32 s68, s31, 24\ns_lshl_b32 s70, s32, 16\ns_add_u32 s68, s68, s70\ns_add_u32 s68, s68, {61440*256}")
        A(f"s_mul_i32 s69, s2, {self.rot}\ns_add_u32 s69, s69, s30\ns_lshl_b32 s69, s69, 10")
        A(f"s_lshl_b32 s78, s30, 10\ns_add_u32 s78, s78, {KB}")
        A("s_and_b32 s70, s30, 3\ns_lshl_b32 s70, s70, 2\nv_lshrrev_b32 v19, 4, v0\nv_and_b32 v18, 15, v0")
        A("v_add_u32 v17, s70, v19\nv_xor_b32 v17, v17, v18\nv_lshlrev_b32 v17, 4, v17\nv_lshl_add_u32 v6, v19, 8, v17")
        def ld_w1(j):
            def f():
                A(f"s_add_u32 s70, s67, {j*8*9216}\ns_add_u32 s71, s66, {j*1024}")
                self.dma("v4", 48, "s70", "s71", "w1")
            return f
        def kvoff(j): A(f"s_add_u32 s70, s69, {j*8192}\ns_and_b32 s70, s70, 0xffff\ns_add_u32 s70, s70, s68")
        def ld_k(j):
            def f():
                kvoff(j); A(f"s_add_u32 s71, s78, {j*8192}")
                self.dma("v6", 36, "s70", "s71", "k")
            return f
        def ld_v(j):
            def f():
                kvoff(j); A(f"buffer_load_dwordx4 v[{44+4*j}:{47+4*j}], v2, s[40:43], s70 offen nt")
            return f
        T = lambda k, t: (lambda: self.ld_term(k, t))
        loads = [None, None] + [ld_w1(j) for j in range(3)] + [ld_k(j) for j in range(8)] + [ld_v(j) for j in range(8)] \
              + [T("w2",0), T("w2",1), T("wo",0), T("wo",1)]
        N = len(loads); issued = 2
        if self.early23:
            while issued < D: loads[issued](); issued += 1
        A("s_barrier")
        while issued < D: loads[issued](); issued += 1
        self.term_setup()
        self.masks_w()
        A("v_and_b32 v17, 1, v0\nv_lshlrev_b32 v17, 4, v17\nv_mov_b32 v18, 0xffff\nv_lshlrev_b32 v18, v17, v18\nv_bfe_u32 v17, v0, 1, 2")
        for j in range(4):
            A(f"v_cmp_eq_u32 vcc, {j}, v17\ns_nop 1\nv_cndmask_b32 v{116+j}, 0, v18, vcc")
        A(f"v_bfe_u32 v17, v0, 3, 1\nv_lshlrev_b32 v17, 10, v17\nv_lshrrev_b32 v18, 4, v0\nv_lshl_add_u32 v16, v18, 2, v17\ns_lshl_b32 s70, s30, 4\ns_add_u32 s70, s70, {PBUF}\nv_add_u32 v16, s70, v16")
        PV0 = self.PV0
        for i in range(0, 21):
            A(f"s_waitcnt vmcnt({issued - 1 - i})")
            if i in (self.IA, self.FB1, self.IB, 17):
                sk = self.lab("prog")
                A(f"s_cmp_lg_u32 s30, 0\ns_cbranch_scc1 {sk}")
                self.lds_setv(F_PROG, i)
                A(f"{sk}:")
            if self.so and i in (1, 4, 8, 16): self.stamp("s", {1:10, 4:11, 8:12, 16:13}[i])
            if i == 1: self.lds_inc(CNT_WQ)
            if i == 4: self.lds_inc(CNT_W1)
            if i == 12:
                self.lds_inc(CNT_K); self.stamp("s", 2)
            if i == 20:
                self.stamp("s", 5)
                A(f"v_mfma_f32_16x16x32_bf16 v[120:123], v[{76+28}:{79+28}], v[{44+28}:{47+28}], v[120:123]")
                A("s_lshl_b32 s70, s30, 10\nv_lshl_add_u32 v17, v0, 4, s70\ns_nop 5")
                A(f"ds_write_b128 v17, v[120:123] offset:{ACCO}")
                self.lds_inc(CNT_O)
                if not self.so: self.stamp("s", 6)
                while issued < N: loads[issued](); issued += 1
                break
            tgt = min(N, i + 1 + D)
            while issued < tgt:
                loads[issued](); issued += 1
            if i == PV0:
                self.spin(CNT_L, 4)
                self.tagfix()
                for t in range(8): A(f"ds_read_b32 v{108+t}, v16 offset:{128*t}")
                A("s_waitcnt lgkmcnt(0)")
                for t in range(8):
                    for j in range(4): A(f"v_and_b32 v{76+4*t+j}, v{116+j}, v{108+t}")
                A("s_nop 1")
                for t in range(0, i - 13 + 1):
                    c = "0" if t == 0 else "v[120:123]"
                    A(f"v_mfma_f32_16x16x32_bf16 v[120:123], v[{76+4*t}:{79+4*t}], v[{44+4*t}:{47+4*t}], {c}")
                if not self.so: self.stamp("s", 4)
            if PV0 < i <= 19:
                t = i - 13
                A(f"v_mfma_f32_16x16x32_bf16 v[120:123], v[{76+4*t}:{79+4*t}], v[{44+4*t}:{47+4*t}], v[120:123]")
        A("L_term:")
        A("s_cmp_lt_u32 s2, 216\ns_cbranch_scc1 L_term_a\ns_cmp_ge_u32 s2, 252\ns_cbranch_scc1 L_term_a")
        self.ld_term("w2", 2); self.ld_term("w2", 3)
        A("s_branch L_term_b\nL_term_a:")
        for r in range(36, 44): A(f"v_mov_b32 v{r}, 0")
        A("L_term_b:")
        self.spin(F_H, 1)
        for t in range(4): A(f"ds_read_b32 v{112+t}, v15 offset:{HBUF + 32*t}")
        A("s_waitcnt lgkmcnt(0)")
        for t in range(4):
            for j in range(4): A(f"v_and_b32 v{76+4*t+j}, v{10+j}, v{112+t}")
        A("s_waitcnt vmcnt(0)")
        self.lds_inc(CNT_E)
        self.stamp("s", 34)
        A("v_mfma_f32_16x16x32_bf16 v[124:127], v[76:79], v[20:23], 0")
        A("v_mfma_f32_16x16x32_bf16 v[124:127], v[80:83], v[24:27], v[124:127]")
        A("v_mfma_f32_16x16x32_bf16 v[124:127], v[84:87], v[36:39], v[124:127]")
        A("v_mfma_f32_16x16x32_bf16 v[124:127], v[88:91], v[40:43], v[124:127]")
        A("v_mov_b32 v110, s34\nv_mov_b32 v111, s35")
        self.spin(F_O, 1, sleep=self.fast)
        if not self.so: self.stamp("s", 8)
        A(f"ds_read_b32 v112, v15 offset:{OBUF}\nds_read_b32 v113, v15 offset:{OBUF+32}\ns_waitcnt lgkmcnt(0)")
        for n in range(2):
            for j in range(4): A(f"v_and_b32 v{92+4*n+j}, v{10+j}, v{112+n}")
        A("s_nop 1")
        A("v_mfma_f32_16x16x32_bf16 v[124:127], v[92:95], v[28:31], v[124:127]")
        A("v_mfma_f32_16x16x32_bf16 v[124:127], v[96:99], v[32:35], v[124:127]")
        self.extract_E(124, "v108", "v109")
        self.exec_n8()
        if not self.so: A("global_store_dwordx4 v14, v[108:111], s[74:75] sc1")
        if not self.so: self.stamp("s", 9)
        A("s_cmp_ge_u32 s2, 72\ns_cbranch_scc1 L_term_end")
        if self.so:
            pass
        elif self.mw3:
            A("s_cmp_ge_u32 s30, 8\ns_cbranch_scc1 L_term_end")
            A("s_mov_b64 exec, -1")
            A(f"s_lshl_b32 s70, s2, 14\ns_lshl_b32 s71, s30, 11\ns_add_u32 s70, s70, s71\ns_add_u32 s70, s70, {WS_X3}\ns_add_u32 s74, s28, s70\ns_addc_u32 s75, s29, 0")
            A(f"v_and_b32 v17, 3, v0\nv_lshlrev_b32 v17, 6, v17\ns_lshl_b32 s71, s30, 3\nv_add_u32 v17, s71, v17")
            if self.slp3: A(f"s_sleep {self.slp3}")
            else: A("s_waitcnt vmcnt(0)")
            r = self.gather_begin("x3")
            A("global_load_dwordx4 v[20:23], v2, s[74:75] sc1\nglobal_load_dwordx4 v[24:27], v2, s[74:75] offset:1024 sc1\ns_waitcnt vmcnt(0)")
            self.gather_check([22, 26], r)
            A("v_add_f32 v20, v20, v24\nv_add_f32 v21, v21, v25\ns_nop 0")
            self.allreduce2("v_add_f32", "v20", "v21", "v22", "v23", (4, 8))
            A(f"s_mov_b64 exec, 0xf\nds_write_b64 v17, v[20:21] offset:{RED}")
            self.lds_inc(CNT_T)
        else:
            A("s_waitcnt vmcnt(0)")
            self.lds_inc(CNT_T)
        A("L_term_end:")
        self.flush_stamps("s", only=0)
        self.flush_stamps("s", only=7, remap={0:21, 2:23, 4:25, 5:26, 6:27, 34:35, 8:29, 9:30, 10:14, 11:15, 12:16, 13:17} if self.so else {0:21, 2:23, 4:25, 5:26, 6:27, 34:35, 8:29, 9:30})
        A("s_endpgm")

    def stage1(self, ldsbase_sreg, xrow_sreg, acc, cnt):
        A = self.A
        A(f"v_add_u32 v16, {ldsbase_sreg}, v2\nv_add_u32 v17, {xrow_sreg}, v15")
        for n in range(6):
            A(f"ds_read_b32 v{68+n}, v17 offset:{XBUF + 32*n}")
        for n in range(6):
            A(f"ds_read_b128 v[{20+4*n}:{23+4*n}], v16 offset:{1024*n}")
        A("s_waitcnt lgkmcnt(6)")
        for n in range(6):
            for j in range(4): A(f"v_and_b32 v{44+4*n+j}, v{10+j}, v{68+n}")
        A("s_waitcnt lgkmcnt(0)")
        for n in range(6):
            c = "0" if n == 0 else "v[76:79]"
            A(f"v_mfma_f32_16x16x32_bf16 v[76:79], v[{44+4*n}:{47+4*n}], v[{20+4*n}:{23+4*n}], {c}")
        A("s_lshl_b32 s71, s71, 8\nv_add_u32 v17, s71, v14")
        self.extract_E(76, "v80", "v81")
        self.exec_n8()
        A(f"ds_write_b64 v17, v[80:81] offset:{acc}")
        self.lds_inc(cnt)

    def xwave(self):
        A = self.A; self.vt = "v9"
        A("L_x:")
        A("s_sub_u32 s30, s30, 10")
        A("v_lshlrev_b32 v2, 4, v0")
        self.wq_setup(None)
        A("s_waitcnt lgkmcnt(0)")
        A("s_load_dwordx2 s[34:35], s[28:29], 0")
        A("s_cmp_lg_u32 s30, 0\ns_cbranch_scc1 L_x_nold")
        self.srd(44, 10, 576*4096*2)
        A(f"s_add_u32 s65, s65, {16*65536}\ns_mov_b32 s66, {WQB + 16*1024}")
        self.dma("v3", 44, "s65", "s66")
        A(f"s_add_u32 s70, s65, 65536\ns_mov_b32 s66, {WQB + 17*1024}")
        self.dma("v3", 44, "s70", "s66")
        A("L_x_nold:")
        A("s_barrier")
        if self.so: A("s_endpgm")
        self.masks_w()
        A("v_and_b32 v19, 7, v0\nv_lshlrev_b32 v14, 5, v19\nv_lshrrev_b32 v18, 4, v0\nv_lshl_add_u32 v14, v18, 3, v14")
        A("s_cmp_lg_u32 s30, 0\ns_cbranch_scc1 L_x_q")
        A("s_waitcnt vmcnt(0)")
        self.lds_inc(CNT_WQ)
        A("s_branch L_x_h")
        A("L_x_q:")
        A(f"s_sub_u32 s71, s30, 1\ns_mul_i32 s66, s71, 6144\ns_add_u32 s66, s66, {WQB}")
        A("s_mul_i32 s67, s64, 576\ns_mul_i32 s70, s71, 192\ns_add_u32 s67, s67, s70")
        self.spin(F_X, 1)
        self.spin(CNT_WQ, 9)
        self.stage1("s66", "s67", ACCQ, CNT_Q)
        self.stamp("x", 22)
        A("L_x_h:")
        A("s_cmp_ge_u32 s2, 216\ns_cbranch_scc1 L_x_qk")
        A(f"s_mul_i32 s66, s30, 6144\ns_add_u32 s66, s66, {W1B}")
        A(f"s_mul_hi_u32 s67, s2, {(2**32+71)//72}\ns_mul_i32 s67, s67, 768\ns_mul_i32 s70, s30, 192\ns_add_u32 s67, s67, s70")
        self.spin(F_X, 1)
        self.spin(CNT_W1, 8)
        A("s_mov_b32 s71, s30")
        self.stage1("s66", "s67", ACCH, CNT_H)
        A("L_x_qk:")
        A("v_and_b32 v18, 15, v0\nv_lshrrev_b32 v19, 4, v0")
        A(f"v_lshlrev_b32 v17, 4, v19\nv_lshl_add_u32 v4, v18, 5, v17\nv_add_u32 v4, {QBUF}, v4\nv_mov_b32 v5, {ZERO}")
        A("v_and_b32 v3, 7, v18\nv_cmp_eq_u32 vcc, 0, v3\ns_nop 1\nv_cndmask_b32 v3, v5, v4, vcc")
        A("v_subrev_u32 v4, 128, v4\nv_and_b32 v17, 7, v18\nv_cmp_eq_u32 vcc, 4, v17\ns_nop 1\nv_cndmask_b32 v4, v5, v4, vcc")
        A(f"s_lshl_b32 s71, s30, 14\ns_add_u32 s71, s71, {KB}\nv_lshl_add_u32 v5, v18, 8, s71")
        for j in range(4):
            A(f"v_add_u32 v17, {4*j}, v19\nv_xor_b32 v17, v17, v18\nv_lshl_add_u32 v{68+j}, v17, 4, v5")
        A(f"v_lshrrev_b32 v7, 5, v0\nv_lshlrev_b32 v6, 10, v7\nv_lshlrev_b32 v7, 2, v7\nv_and_b32 v17, 31, v0\nv_lshl_add_u32 v6, v17, 2, v6")
        A(f"s_lshl_b32 s71, s30, 8\ns_add_u32 s71, s71, {PBUF}\nv_add_u32 v6, s71, v6")
        A("v_mov_b32 v124, v68\nv_mov_b32 v125, v69\nv_mov_b32 v126, v70\nv_mov_b32 v127, v71")
        self.spin(CNT_K, 8)
        for T in range(4):
            for j in range(4):
                r = 52 + 16*T + 4*j
                A(f"ds_read_b128 v[{r}:{r+3}], v{124+j} offset:{4096*T}")
        self.spin(F_Q, 1)
        self.tagfix()
        for j in range(4): A(f"ds_read_b128 v[{20+4*j}:{23+4*j}], v3 offset:{64*j}")
        for j in range(4): A(f"ds_read_b128 v[{36+4*j}:{39+4*j}], v4 offset:{64*j}")
        A("s_waitcnt lgkmcnt(0)")
        for ch in range(2):
            Dr = 116 + 4*ch
            for j in range(4):
                c = "0" if j == 0 else f"v[{Dr}:{Dr+3}]"
                r = 52 + 32*ch + 4*j
                A(f"v_mfma_f32_16x16x32_bf16 v[{Dr}:{Dr+3}], v[{20+4*j}:{23+4*j}], v[{r}:{r+3}], {c}")
            for j in range(4):
                r = 52 + 32*ch + 16 + 4*j
                A(f"v_mfma_f32_16x16x32_bf16 v[{Dr}:{Dr+3}], v[{36+4*j}:{39+4*j}], v[{r}:{r+3}], v[{Dr}:{Dr+3}]")
        A("s_nop 7")
        for v in ("v116", "v120"):
            self.rnd(v, v); A(f"v_mul_f32 {v}, {SCALE:#x}, {v}"); self.rnd(v, v)
        A("v_max_f32 v117, v116, v120")
        self.allreduce("v_max_f32", "v117", "v118", s32=False)
        A("s_mov_b32 exec_lo, 1\ns_mov_b32 exec_hi, 1")
        A(f"ds_max_f32 v7, v117 offset:{MX}")
        self.lds_inc(CNT_M)
        self.spin(CNT_M, 4, sleep=self.fast)
        A(f"ds_read_b32 v117, v7 offset:{MX}\ns_waitcnt lgkmcnt(0)")
        A(f"v_sub_f32 v116, v116, v117\nv_sub_f32 v120, v120, v117\nv_mul_f32 v116, {LOG2E:#x}, v116\nv_mul_f32 v120, {LOG2E:#x}, v120")
        A("v_exp_f32 v116, v116\nv_exp_f32 v120, v120\ns_nop 0")
        A("v_cvt_pk_bf16_f32 v118, v116, v116\nv_cvt_pk_bf16_f32 v119, v120, v120\nv_add_f32 v116, v116, v120")
        A("ds_write_b32 v6, v118\nds_write_b32 v6, v119 offset:128")
        self.allreduce("v_add_f32", "v116", "v117", s32=False)
        A("s_mov_b32 exec_lo, 1\ns_mov_b32 exec_hi, 1")
        A(f"s_lshl_b32 s70, s30, 2\nv_lshl_add_u32 v17, v7, 2, s70\nds_write_b32 v17, v116 offset:{LW}")
        self.lds_inc(CNT_L)
        self.stamp("x", 24)
        A("s_cmp_eq_u32 s30, 0\ns_cbranch_scc1 L_t8")
        A("L_x_end:")
        self.flush_stamps("x", only=1)
        A("s_endpgm")
        A("L_t8:")
        A("s_mov_b32 s30, 8")
        self.term_setup()
        self.spin(F_PROG, 17)
        for k, t in (("w2",0), ("w2",1), ("wo",0), ("wo",1)): self.ld_term(k, t)
        A("s_branch L_term")

    def c1(self):
        A = self.A; self.vt = "v19"
        A("L_c1:")
        if self.prio: A("s_setprio 3")
        A("v_lshlrev_b32 v2, 2, v0")
        A("s_waitcnt lgkmcnt(0)")
        self.srd(36, 4, 1152)
        for k in range(5): A(f"buffer_load_dword v{10+k}, v2, s[36:39], 0 offen offset:{256*k}")
        A("s_load_dwordx2 s[34:35], s[28:29], 0")
        A("s_barrier")
        if self.so: A("s_endpgm")
        A("s_waitcnt vmcnt(0)")
        for k in range(5):
            A(f"v_lshlrev_b32 v{20+2*k}, 16, v{10+k}\nv_and_b32 v{21+2*k}, 0xffff0000, v{10+k}")
        self.tree_sum([20,21,22,23,24,25,26,27,28,29][:0] or [], 1)
        A("v_add_f32 v30, v20, v21\nv_add_f32 v31, v22, v23\nv_add_f32 v42, v24, v25\nv_add_f32 v43, v26, v27\nv_add_f32 v44, v28, v29")
        A("v_add_f32 v30, v30, v31\nv_add_f32 v42, v42, v43\nv_add_f32 v30, v30, v44\nv_add_f32 v30, v30, v42")
        self.allreduce("v_add_f32", "v30", "v31")
        A(f"v_mul_f32 v30, {INV576:#x}, v30")
        A("v_cmp_gt_u32 vcc, 32, v0")
        for k in range(10): A(f"v_sub_f32 v{32+k}, v{20+k}, v30")
        A("v_cndmask_b32 v40, 0, v40, vcc\nv_cndmask_b32 v41, 0, v41, vcc")
        A("v_mul_f32 v31, v32, v32\nv_mul_f32 v42, v33, v33")
        for k in range(34, 42, 2): A(f"v_fmac_f32 v31, v{k}, v{k}\nv_fmac_f32 v42, v{k+1}, v{k+1}")
        A("v_add_f32 v31, v31, v42")
        self.allreduce("v_add_f32", "v31", "v42")
        A(f"v_mul_f32 v31, {INV576:#x}, v31")
        self.rnd("v30", "v30"); self.rnd("v31", "v31")
        A(f"v_add_f32 v31, {EPS:#x}, v31"); self.rnd("v31", "v31")
        A("v_sqrt_f32 v31, v31\ns_nop 0"); self.rnd("v31", "v31")
        A("v_rcp_f32 v31, v31")
        for k in range(10): A(f"v_sub_f32 v{32+k}, v{20+k}, v30")
        for k in range(10): A(f"v_cvt_pk_bf16_f32 v{32+k}, v{32+k}, v{32+k}")
        for k in range(10): A(f"v_and_b32 v{32+k}, 0xffff0000, v{32+k}")
        for k in range(10): A(f"v_mul_f32 v{32+k}, v{32+k}, v31")
        for k in range(10): A(f"v_cvt_pk_bf16_f32 v{32+k}, v{32+k}, v{32+k}")
        A("v_lshlrev_b32 v3, 3, v0")
        for k in range(4): A(f"ds_write_b64 v3, v[{32+2*k}:{33+2*k}] offset:{XBUF + 512*k}")
        A(f"s_mov_b32 exec_hi, 0\nds_write_b64 v3, v[40:41] offset:{XBUF + 2048}\ns_mov_b64 exec, -1")
        self.lds_inc(F_X)
        A("s_waitcnt lgkmcnt(0)")
        self.tagfix()
        self.stamp("c1", 10)
        A(f"s_lshl_b32 s70, s31, 13\ns_add_u32 s70, s70, {WS_X1}\ns_add_u32 s40, s28, s70\ns_addc_u32 s41, s29, 0")
        A("s_lshl_b32 s70, s64, 11\ns_lshl_b32 s71, s33, 9\ns_add_u32 s70, s70, s71")
        A("v_lshlrev_b32 v4, 4, v0\nv_add_u32 v5, s70, v4")
        A("v_mov_b32 v46, s34\nv_mov_b32 v47, s35")
        A("s_getreg_b32 s79, hwreg(HW_REG_XCC_ID, 0, 4)")
        A(f"s_mul_i32 s70, s31, {8192-256}\ns_sub_u32 s78, {WS_XI - WS_X1}, s70")
        A("v_and_b32 v6, 15, v0\nv_lshlrev_b32 v6, 4, v6\nv_add_u32 v6, s78, v6")
        A("s_lshl_b32 s70, s32, 4\ns_add_u32 s78, s78, s70")
        self.spin(CNT_Q, 3)
        for w in range(3): A(f"ds_read_b64 v[{48+2*w}:{49+2*w}], v3 offset:{ACCQ + 256*w}")
        A("s_waitcnt lgkmcnt(0)\nv_add_f32 v44, v48, v50\nv_add_f32 v45, v49, v51\nv_add_f32 v44, v44, v52\nv_add_f32 v45, v45, v53")
        A("s_mov_b32 exec_lo, 0\ns_mov_b32 exec_hi, 1\nv_mov_b32 v44, s79\nv_mov_b32 v45, 0\nv_mov_b32 v5, s78\ns_mov_b32 exec_lo, -1")
        if self.dual1:
            A(f"s_add_u32 s42, s40, {WS_ALT}\ns_addc_u32 s43, s41, 0")
            A("global_store_dwordx4 v5, v[44:47], s[42:43]")
        A("global_store_dwordx4 v5, v[44:47], s[40:41] sc1\ns_mov_b64 exec, -1")
        self.stamp("c1", 11)
        A("v_add_u32 v5, 4096, v4")
        self.spin(F_PROG, self.IA)
        self.hint(40, [512*p + 31*16 + 8 for p in range(16)], 48)
        self.stamp("c1", 36)
        if self.dual1: A("s_mov_b32 s48, s42\ns_mov_b32 s49, s43")
        else: A("s_mov_b32 s48, s40\ns_mov_b32 s49, s41")
        r = self.gather_begin("x1")
        for rg in range(4):
            for h in range(2):
                off = rg*2048 + h*1024; reg = 48 + 4*(2*rg + h)
                A(f"global_load_dwordx4 v[{reg}:{reg+3}], {'v4' if off < 4096 else 'v5'}, s[48:49] offset:{off % 4096} sc1")
        A("global_load_dwordx4 v[80:83], v6, s[48:49] sc1")
        A("s_waitcnt vmcnt(0)")
        for n, rr in enumerate([48 + 4*i + 2 for i in range(8)] + [82]):
            if n == 0: A(f"v_cmp_ne_u64 s[76:77], s[34:35], v[{rr}:{rr+1}]")
            else: A(f"v_cmp_ne_u64 vcc, s[34:35], v[{rr}:{rr+1}]\ns_or_b64 s[76:77], s[76:77], vcc")
        ok = self.lab("x1ok"); nofb = self.lab("x1nofb")
        if 'chk' not in self.off:
            A(f"s_cmp_eq_u64 s[76:77], 0\ns_cbranch_scc1 {ok}")
            if self.dual1:
                A(f"ds_read_b32 v19, v1 offset:{F_PROG}\ns_waitcnt lgkmcnt(0)\nv_readfirstlane_b32 s80, v19\ns_cmp_lt_u32 s80, {self.FB1}\ns_cbranch_scc1 {nofb}")
                A(f"s_mov_b32 s48, s40\ns_mov_b32 s49, s41\n{nofb}:")
            A(f"s_add_u32 s81, s81, 1\ns_cmp_lt_u32 s81, {POLL_LIMIT}\ns_cbranch_scc1 {r}\ns_endpgm\n{ok}:")
        A("v_readfirstlane_b32 s70, v80\ns_nop 1\nv_cmp_ne_u32 vcc, s70, v80\ns_cmp_eq_u64 vcc, 0\ns_cselect_b32 s79, %d, 0" % (1 if self.fastx2 else 0))
        for h in range(2):
            for e in range(2):
                b = 48 + 4*h + e
                A(f"v_add_f32 v{b}, v{b}, v{b+8}\nv_add_f32 v{b+16}, v{b+16}, v{b+24}\nv_add_f32 v{b}, v{b}, v{b+16}")
        A("v_cvt_pk_bf16_f32 v48, v48, v49\nv_cvt_pk_bf16_f32 v52, v52, v53")
        A(f"ds_write_b32 v2, v48 offset:{QBUF}\nds_write_b32 v2, v52 offset:{QBUF+256}")
        self.lds_inc(F_Q)
        self.stamp("c1", 12)
        A(f"s_lshl_b32 s70, s31, 16\ns_add_u32 s70, s70, {WS_X2}\ns_add_u32 s44, s28, s70\ns_addc_u32 s45, s29, 0")
        A("v_lshrrev_b32 v7, 5, v0\nv_lshlrev_b32 v7, 15, v7\nv_bfe_u32 v6, v0, 1, 3\nv_lshl_add_u32 v7, v6, 12, v7")
        A("v_and_b32 v6, 1, v0\nv_lshl_add_u32 v7, v6, 6, v7\nv_bfe_u32 v6, v0, 4, 1\nv_lshl_add_u32 v7, v6, 5, v7")
        A("s_lshl_b32 s70, s32, 7\nv_add_u32 v7, s70, v7")
        A("v_and_b32 v6, 15, v0\nv_lshlrev_b32 v9, 12, v6\ns_lshl_b32 s70, s32, 4\ns_add_u32 s70, s70, 2048\nv_add_u32 v9, s70, v9")
        A("v_lshrrev_b32 v6, 3, v6\nv_lshlrev_b32 v10, 2, v6\nv_lshlrev_b32 v11, 4, v6")
        A("v_mov_b32 v50, s34\nv_mov_b32 v51, s35\nv_mov_b32 v54, s34\nv_mov_b32 v55, s35\nv_mov_b32 v58, s34\nv_mov_b32 v59, s35")
        A("s_lshl_b32 s70, s32, 12\ns_add_u32 s46, s44, s70\ns_addc_u32 s47, s45, 0")
        A("v_lshrrev_b32 v8, 3, v0\nv_lshlrev_b32 v8, 4, v8\nv_add_u32 v8, 2048, v8")
        self.spin(CNT_L, 4)
        A(f"ds_read_b32 v56, v10 offset:{MX}\nds_read_b128 v[60:63], v11 offset:{LW}\ns_waitcnt lgkmcnt(0)")
        A("v_add_f32 v60, v60, v61\nv_add_f32 v62, v62, v63\nv_add_f32 v57, v60, v62")
        self.spin(CNT_O, 8, sleep=self.fast)
        self.stamp("c1", 31)
        for w in range(8): A(f"ds_read_b128 v[{76+4*w}:{79+4*w}], v4 offset:{ACCO + 1024*w}")
        A("s_waitcnt lgkmcnt(0)")
        self.tree_sum([76+4*w for w in range(8)], 4)
        A("v_mov_b32 v48, v76\nv_mov_b32 v49, v77\nv_mov_b32 v52, v78\nv_mov_b32 v53, v79")
        slow = self.lab("x2slow"); pub = self.lab("x2pub")
        A(f"s_cmp_eq_u32 s79, 0\ns_cbranch_scc1 {slow}")
        A("global_store_dwordx4 v7, v[48:51], s[44:45]\nglobal_store_dwordx4 v7, v[52:55], s[44:45] offset:16")
        A("s_mov_b64 exec, 0xffff\nglobal_store_dwordx4 v9, v[56:59], s[44:45]\ns_mov_b64 exec, -1")
        A(f"s_branch {pub}\n{slow}:")
        A("global_store_dwordx4 v7, v[48:51], s[44:45] sc1\nglobal_store_dwordx4 v7, v[52:55], s[44:45] offset:16 sc1")
        A("s_mov_b64 exec, 0xffff\nglobal_store_dwordx4 v9, v[56:59], s[44:45] sc1\ns_mov_b64 exec, -1")
        if self.KE: self.spin(CNT_E, self.KE, sleep=self.fast)
        A(f"{pub}:")
        self.stamp("c1", 14)
        def x2round(b):
            A(f"global_load_dwordx4 v[{b}:{b+3}], v4, s[46:47] sc1\nglobal_load_dwordx4 v[{b+4}:{b+7}], v4, s[46:47] offset:1024 sc1")
            A(f"global_load_dwordx4 v[{b+8}:{b+11}], v8, s[46:47] sc1\nglobal_load_dwordx4 v[{b+12}:{b+15}], v8, s[46:47] offset:128 sc1")
        def x2chk(b, ok):
            A(f"v_cmp_ne_u64 s[76:77], s[34:35], v[{b+2}:{b+3}]\nv_cmp_ne_u64 vcc, s[34:35], v[{b+6}:{b+7}]\ns_or_b64 s[76:77], s[76:77], vcc")
            A(f"v_cmp_ne_u64 vcc, s[34:35], v[{b+10}:{b+11}]\ns_or_b64 s[76:77], s[76:77], vcc\nv_cmp_ne_u64 vcc, s[34:35], v[{b+14}:{b+15}]\ns_or_b64 s[76:77], s[76:77], vcc")
            A(f"s_cmp_eq_u64 s[76:77], 0\ns_cbranch_scc1 {ok}")
        nr = self.nr2
        r = self.gather_begin("x2")
        oks = [self.lab("x2ok") for _ in range(nr)]
        for k in range(nr):
            x2round(60 + 16*k)
            if k < nr - 1: A(f"s_sleep {self.slp2}")
        for k in range(nr):
            A(f"s_waitcnt vmcnt({4*(nr-1-k)})")
            x2chk(60 + 16*k, oks[k])
        A(f"s_add_u32 s81, s81, 1\ns_cmp_lt_u32 s81, {POLL_LIMIT}\ns_cbranch_scc1 {r}\ns_endpgm")
        for k in range(nr - 1, 0, -1):
            A(f"{oks[k]}:")
            for q in (0, 1, 4, 5, 8, 9, 12, 13): A(f"v_mov_b32 v{60+q}, v{60+16*k+q}")
            if k > 1: A(f"s_branch {oks[0]}")
        A(f"{oks[0]}:")
        self.stamp("c1", 33)
        A("v_max_f32 v56, v68, v72")
        self.allreduce("v_max_f32", "v56", "v57", rors=(8,))
        A(f"v_sub_f32 v68, v68, v56\nv_sub_f32 v72, v72, v56\nv_mul_f32 v68, {LOG2E:#x}, v68\nv_mul_f32 v72, {LOG2E:#x}, v72")
        A("v_exp_f32 v68, v68\nv_exp_f32 v72, v72\ns_nop 0")
        A("v_mul_f32 v60, v60, v68\nv_mul_f32 v61, v61, v68\nv_mul_f32 v62, v69, v68")
        A("v_fmac_f32 v60, v64, v72\nv_fmac_f32 v61, v65, v72\nv_fmac_f32 v62, v73, v72")
        A("s_nop 0")
        for v in ("v60", "v61", "v62"): A(f"v_add_f32_dpp {v}, {v}, {v} row_ror:8 row_mask:0xf bank_mask:0xf")
        for which in (16, 32):
            A("v_mov_b32 v56, v60\nv_mov_b32 v57, v61\nv_mov_b32 v58, v62")
            A(f"v_permlane{which}_swap_b32 v60, v56\nv_permlane{which}_swap_b32 v61, v57\nv_permlane{which}_swap_b32 v62, v58")
            A("v_add_f32 v60, v60, v56\nv_add_f32 v61, v61, v57\nv_add_f32 v62, v62, v58")
        A("v_rcp_f32 v62, v62\ns_nop 0\nv_mul_f32 v60, v60, v62\nv_mul_f32 v61, v61, v62")
        A("v_cvt_pk_bf16_f32 v60, v60, v60\nv_cvt_pk_bf16_f32 v61, v61, v61")
        A(f"s_mov_b64 exec, 0xff\nds_write_b64 v3, v[60:61] offset:{OBUF}\ns_mov_b64 exec, -1")
        self.lds_inc(F_O)
        self.stamp("c1", 15)
        self.flush_stamps("c1")
        A("s_endpgm")

    def c2(self):
        A = self.A; self.vt = "v15"
        A("L_c2:")
        if self.prio: A("s_setprio 2")
        A("v_lshlrev_b32 v4, 4, v0\nv_mov_b32 v8, 0\nv_mov_b32 v9, 0\nv_mov_b32 v10, 0\nv_mov_b32 v11, 0")
        A(f"s_mov_b32 exec_hi, 0xffff\nds_write_b128 v4, v[8:11] offset:{ZERO}\ns_mov_b64 exec, -1")
        A(f"v_mov_b32 v8, 0xff800000\nv_mov_b32 v9, 0xff800000\ns_mov_b64 exec, 1\nds_write_b64 v1, v[8:9] offset:{MX}\ns_mov_b64 exec, -1")
        A("s_waitcnt lgkmcnt(0)")
        A("s_load_dwordx2 s[34:35], s[28:29], 0")
        A("s_barrier")
        if self.so: A("s_endpgm")
        A("s_lshl_b32 s72, s2, 4\ns_lshl_b32 s70, s2, 5\ns_sub_u32 s70, s70, %d" % (32*216 - 3456))
        A("s_cmp_lt_u32 s2, 216\ns_cselect_b32 s72, s72, s70\ns_cselect_b32 s73, 7, 15")
        A("v_and_b32 v5, s73, v0")
        self.srd(36, 18, 4608*2)
        A("s_lshl_b32 s70, s72, 1\nv_lshl_add_u32 v6, v5, 2, s70")
        A("buffer_load_dword v12, v6, s[36:39], 0 offen")
        self.srd(40, 4, 1152); self.srd(44, 22, 1152)
        A("v_and_b32 v7, 3, v0\nv_lshlrev_b32 v7, 2, v7\ns_lshl_b32 s70, s2, 4\nv_add_u32 v7, s70, v7")
        A("buffer_load_dword v13, v7, s[40:43], 0 offen\nbuffer_load_dword v14, v7, s[44:47], 0 offen")
        A("v_lshlrev_b32 v3, 3, v0")
        A("s_waitcnt lgkmcnt(0)")
        self.tagfix()
        A("v_mov_b32 v46, s34\nv_mov_b32 v47, s35")
        A(f"s_add_u32 s48, s28, {WS_XH}\ns_addc_u32 s49, s29, 0")
        A("s_cmp_ge_u32 s2, 216\ns_cbranch_scc1 L_c2_nopub")
        A(f"s_mul_hi_u32 s66, s2, {(2**32+71)//72}\ns_mul_i32 s70, s66, 72\ns_sub_u32 s70, s2, s70")
        A("s_mul_i32 s70, s70, 1536\ns_lshl_b32 s71, s66, 9\ns_add_u32 s70, s70, s71\nv_add_u32 v8, s70, v4")
        self.spin(CNT_H, 4)
        for w in range(4): A(f"ds_read_b64 v[{48+2*w}:{49+2*w}], v3 offset:{ACCH + 256*w}")
        A("s_waitcnt lgkmcnt(0)")
        self.tree_sum([48, 50, 52, 54], 2)
        A("v_mov_b32 v44, v48\nv_mov_b32 v45, v49\ns_mov_b32 exec_hi, 0")
        A("global_store_dwordx4 v8, v[44:47], s[48:49] sc1\ns_mov_b64 exec, -1")
        self.stamp("c2", 16)
        A("L_c2_nopub:")
        A("s_cmp_ge_u32 s2, 252\ns_cbranch_scc1 L_c2_hdone")
        A("s_lshr_b32 s70, s72, 6\ns_mul_i32 s70, s70, 1536\ns_and_b32 s71, s72, 63\ns_lshl_b32 s71, s71, 3\ns_add_u32 s70, s70, s71")
        A("v_lshl_add_u32 v8, v5, 4, s70")
        A("s_add_u32 s50, s48, s70\ns_addc_u32 s51, s49, 0")
        self.spin(F_PROG, self.IB)
        self.hint(50, [512*rg + 7*16 + 8 for rg in range(3)], 56)
        r = self.gather_begin("xh")
        for rg in range(3): A(f"global_load_dwordx4 v[{16+4*rg}:{19+4*rg}], v8, s[48:49] offset:{512*rg} sc1")
        A("s_waitcnt vmcnt(0)")
        self.gather_check([18, 22, 26], r)
        for e in range(2):
            A(f"v_add_f32 v{16+e}, v{16+e}, v{20+e}\nv_add_f32 v{16+e}, v{16+e}, v{24+e}")
            self.rnd(f"v{16+e}", f"v{16+e}")
        A("v_lshlrev_b32 v18, 16, v12\nv_and_b32 v19, 0xffff0000, v12")
        for e in range(2):
            A(f"v_add_f32 v{16+e}, v{16+e}, v{18+e}")
            self.rnd(f"v{16+e}", f"v{16+e}")
            A(f"v_cmp_gt_f32 vcc, v{16+e}, 0\ns_nop 1\nv_cndmask_b32 v{16+e}, 0, v{16+e}, vcc")
            A(f"v_mul_f32 v{16+e}, v{16+e}, v{16+e}\nv_cvt_pk_bf16_f32 v{16+e}, v{16+e}, v{16+e}")
        A("v_lshlrev_b32 v8, 3, v5")
        A(f"s_mov_b64 exec, 0xffff\nds_write_b64 v8, v[16:17] offset:{HBUF}\ns_mov_b64 exec, -1")
        A("L_c2_hdone:")
        self.lds_inc(F_H)
        self.stamp("c2", 17)
        A("s_cmp_ge_u32 s2, 72\ns_cbranch_scc1 L_c2_end")
        A(f"s_lshl_b32 s70, s2, 14\ns_add_u32 s70, s70, {WS_X3}\ns_add_u32 s50, s28, s70\ns_addc_u32 s51, s29, 0")
        A("v_add_u32 v5, 4096, v4\nv_add_u32 v6, 8192, v4\nv_add_u32 v8, 12288, v4")
        A("s_waitcnt vmcnt(0)")
        A("v_lshlrev_b32 v16, 16, v13\nv_and_b32 v17, 0xffff0000, v13\nv_lshlrev_b32 v18, 16, v14\nv_and_b32 v19, 0xffff0000, v14")
        A("v_add_f32 v16, v16, v18\nv_add_f32 v17, v17, v19")
        self.srd(52, 24, 1152)
        if self.mw3:
            A("v_and_b32 v5, 3, v0\nv_lshlrev_b32 v5, 6, v5")
            self.spin(CNT_T, 8, sleep=self.fast)
            self.stamp("c2", 19)
            for k in range(4): A(f"ds_read_b128 v[{20+4*k}:{23+4*k}], v5 offset:{RED + 16*k}")
            A("s_waitcnt lgkmcnt(0)")
            self.tree_sum([20+2*k for k in range(8)], 2)
        else:
            self.spin(CNT_T, 9, sleep=self.fast)
            self.stamp("c2", 18)
            r = self.gather_begin("x3")
            bases = ["v4", "v5", "v6", "v8"]
            for i in range(16):
                A(f"global_load_dwordx4 v[{20+4*i}:{23+4*i}], {bases[i//4]}, s[50:51] offset:{(i%4)*1024} sc1")
            A("s_waitcnt vmcnt(0)")
            self.gather_check([20+4*i+2 for i in range(16)], r)
            self.stamp("c2", 19)
            self.tree_sum([20+4*i for i in range(16)], 2)
            A("s_nop 0")
            self.allreduce2("v_add_f32", "v20", "v21", "v22", "v23", (4, 8))
        A("v_add_f32 v20, v20, v16\nv_add_f32 v21, v21, v17\nv_cvt_pk_bf16_f32 v20, v20, v21")
        if self.until:
            A(f"s_add_u32 s78, s78, {self.until}\nL_until:\ns_memrealtime s[70:71]\ns_waitcnt lgkmcnt(0)\ns_cmp_lt_u32 s70, s78\ns_cbranch_scc1 L_until")
        if self.burn:
            A(f"s_mov_b32 s70, {self.burn}\nL_burn:\nv_add_f32 v30, v30, v30\nv_add_f32 v30, v30, v30\nv_add_f32 v30, v30, v30\nv_add_f32 v30, v30, v30\ns_sub_u32 s70, s70, 1\ns_cmp_lg_u32 s70, 0\ns_cbranch_scc1 L_burn")
        A("s_mov_b64 exec, 0xf\nbuffer_store_dword v20, v7, s[52:55], 0 offen")
        A("s_cmp_lg_u32 s2, 0\ns_cbranch_scc1 L_c2_noep")
        A("s_mov_b64 exec, 1\nglobal_store_dwordx2 v1, v[46:47], s[28:29] sc1")
        A("L_c2_noep:")
        self.stamp("c2", 20)
        A("L_c2_end:")
        self.flush_stamps("c2")
        A("s_endpgm")

if __name__ == "__main__":
    import argparse
    ap = argparse.ArgumentParser()
    ap.add_argument("--out", default="v2")
    ap.add_argument("--diag", action="store_true"); ap.add_argument("--dbg", action="store_true")
    ap.add_argument("--D", type=int, default=4); ap.add_argument("--rot", type=int, default=4)
    ap.add_argument("--gmap", default="low"); ap.add_argument("--PV0", type=int, default=18)
    ap.add_argument("--off", default="")
    ap.add_argument("--IA", type=int, default=10); ap.add_argument("--IB", type=int, default=14); ap.add_argument("--KE", type=int, default=1)
    ap.add_argument("--burn", type=int, default=0)
    ap.add_argument("--until", type=int, default=0)
    ap.add_argument("--fastx2", type=int, default=1); ap.add_argument("--early23", type=int, default=0); ap.add_argument("--hint3", type=int, default=0)
    ap.add_argument("--slp3", type=int, default=0)
    ap.add_argument("--mw3", type=int, default=1); ap.add_argument("--slp2", type=int, default=6); ap.add_argument("--nr2", type=int, default=1)
    ap.add_argument("--dual1", type=int, default=1); ap.add_argument("--FB1", type=int, default=12)
    ap.add_argument("--so", type=int, default=0); ap.add_argument("--nodma", default="")
    ap.add_argument("--sleep", type=int, default=0); ap.add_argument("--spin1", type=int, default=0); ap.add_argument("--fast", type=int, default=0)
    ap.add_argument("--prio", type=int, default=1); ap.add_argument("--hints", type=int, default=0)
    a = ap.parse_args()
    g = G(diag=a.diag, dbg=a.dbg, D=a.D, rot=a.rot, gmap=a.gmap, PV0=a.PV0, prio=a.prio, hints=a.hints, sleep=a.sleep, spin1=a.spin1, fast=a.fast, so=a.so, nodma=a.nodma, off=a.off, IA=a.IA, IB=a.IB, KE=a.KE, burn=a.burn, until=a.until, fastx2=a.fastx2, early23=a.early23, hint3=a.hint3, slp3=a.slp3, mw3=a.mw3, slp2=a.slp2, nr2=a.nr2, dual1=a.dual1, FB1=a.FB1)
    asm = g.gen()
    build(asm, a.out)
    print("built", a.out, len(asm), "bytes")
```

```python
import sys
from asmlib import header, kernel_begin, descriptor, build, NAME

XBUF, QBUF, ZERO, HBUF, OBUF, MX = 0, 2304, 2816, 3072, 3200, 3264
CNT = 3280
(F_X, CNT_WQ, CNT_W1, CNT_K, CNT_Q, CNT_H, F_Q, CNT_M, CNT_L, CNT_O, F_H, F_O, CNT_T, F_PROG, F_W, CNT_E) = [CNT + 4*i for i in range(16)]
LW = 3392
WBUF = 3456
ACCQ = 3584
ACCH = 4608
PBUF = 5632
RED = 7680
ACCO = 8192
WQB = 16384
W1B = 34816
KB = 59392
LDS_BYTES = 124928
WS_X1 = 0x1000
WS_XH = 0x22000
WS_XS = 0x40000
WS_XI = 0x21000
WS_X2 = 0x280000
WS_X3 = 0x100000
WS_ALT = 0x400000
WS_STAMP = 0x20000000
NSTAMP = 40
SPIN_LIMIT = 1 << 20
POLL_LIMIT = 1 << 16
LOG2E = 0x3fb8aa3b
SCALE = 0x3db504f3
INV576 = 0x3ae38e39
EPS = 0x3727c5ac
NWAVES = 14

class G:
    def __init__(self, diag=False, dbg=False, D=4, rot=4, gmap="low", PV0=18, prio=1, hints=1, sleep=0, spin1=0, fast=0, so=0, nodma='', off='', IA=10, IB=14, IC=0, KE=1, ack3=1, burn=0, until=0, fastx2=1, early23=0, hint3=0, slp3=0, mw3=1, slp2=6, nr2=3, dual1=1, FB1=12, touch=0):
        self.touch = touch
        self.dual1 = dual1; self.FB1 = FB1
        self.mw3 = mw3; self.slp2 = slp2; self.nr2 = nr2
        self.slp3 = slp3
        self.fastx2 = fastx2; self.early23 = early23; self.hint3 = hint3
        self.burn = burn; self.until = until
        self.sleep = sleep; self.spin1 = spin1; self.fast = fast; self.IA = IA; self.IB = IB; self.IC = IC; self.KE = KE; self.ack3 = ack3; self.so = so; self.nodma = nodma; self.off = set(off.split(','))
        self.L = []; self.diag = diag or dbg; self.dbg = dbg; self.D = D; self.rot = rot; self.gmap = gmap
        self.PV0 = PV0; self.prio = prio; self.hints = hints
        self.nlab = 0; self.stamps = {}; self.vt = 'v9'
    def A(self, s):
        if self.off != {''}:
            out = []
            for line in s.split("\n"):
                if 'st' in self.off and line.startswith("global_store") and "sc1" in line: continue
                if 'ld' in self.off and line.startswith("global_load") and "sc1" in line: continue
                out.append(line)
            s = "\n".join(out)
        self.L.append(s)
    def lab(self, base):
        self.nlab += 1; return f"L_{base}_{self.nlab}"
    def stamp(self, kind, k):
        if not self.diag: return
        lst = self.stamps.setdefault(kind, [])
        j = len(lst); assert j < 10; lst.append(k)
        self.A(f"s_memrealtime s[{82+2*j}:{83+2*j}]\ns_waitcnt lgkmcnt(0)")
    def flush_stamps(self, kind, only=None, remap=None):
        if not self.diag: return
        lst = self.stamps.get(kind, [])
        A = self.A; skip = self.lab("nostamp")
        if only is not None: A(f"s_cmp_lg_u32 s30, {only}\ns_cbranch_scc1 {skip}")
        A("s_mov_b64 exec, 1\nv_mov_b32 v1, 0")
        if self.dbg:
            A(f"s_cmp_lg_u32 s2, 0\ns_cbranch_scc1 {skip}")
            rm = {0:1, 10:2, 11:3, 12:4, 2:5, 24:6, 5:7, 14:8, 15:9, 17:10, 9:11, 18:12, 19:13, 20:14, 34:15}
            if remap is None:
                for j, k in enumerate(lst):
                    if k in rm: A(f"v_mov_b32 v2, s{82+2*j}\nglobal_store_dword v1, v2, s[26:27] offset:{4*rm[k]}")
        else:
            A(f"s_add_u32 s72, s28, {WS_STAMP}\ns_addc_u32 s73, s29, 0")
            A(f"s_mul_i32 s70, s2, {NSTAMP*8}\ns_add_u32 s72, s72, s70\ns_addc_u32 s73, s73, 0")
            for j, k in enumerate(lst):
                kk = k if remap is None else remap.get(k)
                if kk is None: continue
                A(f"v_mov_b32 v2, s{82+2*j}\nv_mov_b32 v3, s{83+2*j}\nglobal_store_dwordx2 v1, v[2:3], s[72:73] offset:{8*kk}")
        A(f"{skip}:")
    def spin(self, addr, n, sleep=None):
        if self.so: return
        if sleep is None: sleep = self.sleep
        l = self.lab("spin"); d = self.lab("spun"); vt = self.vt
        one = self.spin1
        if one: self.A("s_mov_b64 exec, 1")
        self.A(f"s_mov_b32 s81, 0\n{l}:\nds_read_b32 {vt}, v1 offset:{addr}\ns_waitcnt lgkmcnt(0)\nv_readfirstlane_b32 s80, {vt}\ns_cmp_ge_u32 s80, {n}\ns_cbranch_scc1 {d}")
        if sleep: self.A(f"s_sleep {sleep}")
        self.A(f"s_add_u32 s81, s81, 1\ns_cmp_lt_u32 s81, {SPIN_LIMIT}\ns_cbranch_scc1 {l}\ns_endpgm\n{d}:")
        if one: self.A("s_mov_b64 exec, -1")
    def lds_inc(self, addr):
        vt = self.vt
        self.A(f"s_mov_b64 exec, 1\nv_mov_b32 {vt}, 1\nds_add_u32 v1, {vt} offset:{addr}\ns_mov_b64 exec, -1")
    def lds_setv(self, addr, val):
        vt = self.vt
        self.A(f"s_mov_b64 exec, 1\nv_mov_b32 {vt}, {val}\nds_write_b32 v1, {vt} offset:{addr}\ns_mov_b64 exec, -1")
    def rnd(self, dst, src):
        self.A(f"v_cvt_pk_bf16_f32 {dst}, {src}, {src}\nv_and_b32 {dst}, 0xffff0000, {dst}")
    def dpp(self, op, v, ctrl):
        self.A(f"s_nop 1\n{op}_dpp {v}, {v}, {v} {ctrl} row_mask:0xf bank_mask:0xf")
    def swap_red(self, op, v, t, which):
        self.A(f"v_mov_b32 {t}, {v}\ns_nop 1\nv_permlane{which}_swap_b32 {v}, {t}\ns_nop 0\n{op} {v}, {v}, {t}")
    def allreduce(self, op, v, t, rors=(1,2,4,8), s16=True, s32=True):
        for r in rors: self.dpp(op, v, f"row_ror:{r}")
        if s16: self.swap_red(op, v, t, 16)
        if s32: self.swap_red(op, v, t, 32)
    def allreduce2(self, op, va, vb, ta, tb, rors):
        A = self.A
        for r in rors:
            A(f"s_nop 0\n{op}_dpp {va}, {va}, {va} row_ror:{r} row_mask:0xf bank_mask:0xf\n{op}_dpp {vb}, {vb}, {vb} row_ror:{r} row_mask:0xf bank_mask:0xf")
        for which in (16, 32):
            A(f"v_mov_b32 {ta}, {va}\nv_mov_b32 {tb}, {vb}\ns_nop 0\nv_permlane{which}_swap_b32 {va}, {ta}\nv_permlane{which}_swap_b32 {vb}, {tb}\ns_nop 0\n{op} {va}, {va}, {ta}\n{op} {vb}, {vb}, {tb}")
    def tree_sum(self, regs, width):
        regs = list(regs)
        while len(regs) > 1:
            nxt = []
            for i in range(0, len(regs) - 1, 2):
                for e in range(width):
                    self.A(f"v_add_f32 v{regs[i]+e}, v{regs[i]+e}, v{regs[i+1]+e}")
                nxt.append(regs[i])
            if len(regs) % 2: nxt.append(regs[-1])
            regs = nxt
    def srd(self, d, p, n):
        self.A(f"s_mov_b32 s{d}, s{p}\ns_and_b32 s{d+1}, s{p+1}, 0xffff\ns_mov_b32 s{d+2}, {n}\ns_mov_b32 s{d+3}, 0x20000")
    def tagfix(self):
        self.A("s_add_u32 s34, s34, 1\ns_addc_u32 s35, s35, 0")
    def masks_w(self):
        A = self.A
        A("v_and_b32 v19, 15, v0\nv_bfe_u32 v18, v19, 1, 1\nv_lshlrev_b32 v18, 4, v18\nv_mov_b32 v17, 0xffff\nv_lshlrev_b32 v17, v18, v17")
        A("v_lshrrev_b32 v19, 2, v19")
        for j in range(4):
            A(f"v_cmp_eq_u32 vcc, {j}, v19\ns_nop 1\nv_cndmask_b32 v{10+j}, 0, v17, vcc")
        A("v_lshrrev_b32 v18, 4, v0\nv_and_b32 v17, 1, v0\nv_lshl_add_u32 v15, v18, 1, v17\nv_lshlrev_b32 v15, 2, v15")
    def extract_E(self, D, E0, E1):
        self.A("s_nop 7")
        self.A(f"v_add_f32_dpp {E0}, v{D+1}, v{D} row_ror:8 row_mask:0xf bank_mask:0xf")
        self.A(f"v_add_f32_dpp {E1}, v{D+3}, v{D+2} row_ror:8 row_mask:0xf bank_mask:0xf")
    def exec_n8(self):
        self.A("s_mov_b32 exec_lo, 0x00ff00ff\ns_mov_b32 exec_hi, 0x00ff00ff")
    def hint(self, base, offs, r0):
        if not self.hints: return
        A = self.A; l = self.lab("hint"); again = self.lab("hagain"); d = self.lab("hdone")
        A(f"s_mov_b32 s81, 0\n{l}:")
        for i, o in enumerate(offs):
            A(f"s_load_dword s{r0+i}, s[{base}:{base+1}], {o} glc")
        A("s_waitcnt lgkmcnt(0)")
        for i in range(len(offs)):
            A(f"s_cmp_lg_u32 s{r0+i}, s34\ns_cbranch_scc1 {again}")
        A(f"s_branch {d}\n{again}:\ns_add_u32 s81, s81, 1\ns_cmp_lt_u32 s81, {POLL_LIMIT}\ns_cbranch_scc1 {l}\n{d}:")
    def gather_begin(self, base):
        r = self.lab(base); self.A(f"s_mov_b32 s81, 0\n{r}:"); return r
    def gather_check(self, pairs, retry):
        A = self.A
        if 'chk' in self.off: return
        for n, r in enumerate(pairs):
            if n == 0: A(f"v_cmp_ne_u64 s[76:77], s[34:35], v[{r}:{r+1}]")
            else: A(f"v_cmp_ne_u64 vcc, s[34:35], v[{r}:{r+1}]\ns_or_b64 s[76:77], s[76:77], vcc")
        d = self.lab("gok")
        A(f"s_cmp_eq_u64 s[76:77], 0\ns_cbranch_scc1 {d}")
        A(f"s_add_u32 s81, s81, 1\ns_cmp_lt_u32 s81, {POLL_LIMIT}\ns_cbranch_scc1 {retry}\ns_endpgm\n{d}:")

    def gen(self):
        A = self.A
        A(header([f"grid=(256,1,1) block=({NWAVES*64},1,1) lds={LDS_BYTES}"]))
        A(kernel_begin(NAME))
        A("s_cmp_ge_u32 s2, 256\ns_cbranch_scc1 L_end")
        if self.diag:
            for r in range(84, 102): A(f"s_mov_b32 s{r}, 0")
            A("s_memrealtime s[82:83]")
        if self.until: A("s_memrealtime s[78:79]")
        A("s_load_dwordx16 s[4:19], s[0:1], 0")
        A("s_load_dwordx8 s[20:27], s[0:1], 64")
        A("s_load_dwordx2 s[28:29], s[0:1], 96")
        A("v_lshrrev_b32 v1, 6, v0\nv_and_b32 v0, 63, v0\ns_nop 0\nv_readfirstlane_b32 s30, v1")
        if self.gmap == "low": A("s_and_b32 s31, s2, 15\ns_lshr_b32 s32, s2, 4")
        else: A("s_lshr_b32 s31, s2, 4\ns_and_b32 s32, s2, 15")
        A("v_mov_b32 v1, 0\ns_and_b32 s33, s32, 3\ns_lshr_b32 s64, s32, 2")
        A("s_cmp_eq_u32 s30, 0\ns_cbranch_scc1 L_c1")
        A("s_cmp_eq_u32 s30, 1\ns_cbranch_scc1 L_c2")
        A("s_cmp_ge_u32 s30, 10\ns_cbranch_scc1 L_x")
        A("s_sub_u32 s30, s30, 2")
        self.stream()
        self.xwave()
        self.c1()
        self.c2()
        A("L_end:\ns_endpgm")
        A(descriptor(NAME, 128))
        return "\n".join(self.L) + "\n"

    def wq_setup(self, tile0_expr):
        A = self.A
        A("v_lshrrev_b32 v19, 3, v0\nv_and_b32 v18, 7, v0\nv_lshlrev_b32 v18, 4, v18")
        A("v_lshl_add_u32 v3, v19, 13, v18")
        A(f"s_mul_i32 s65, s64, {144*8192}\ns_lshl_b32 s70, s31, 9\ns_add_u32 s65, s65, s70\ns_lshl_b32 s70, s33, 7\ns_add_u32 s65, s65, s70")
    def dma(self, pat, srd, soff, ldsaddr_sreg, kind=""):
        if kind and kind in self.nodma.split(","):
            self.A(f"buffer_load_dwordx4 v[76:79], {pat}, s[{srd}:{srd+3}], {soff} offen nt"); return
        self.A(f"s_mov_b32 m0, {ldsaddr_sreg}\ns_nop 0\nbuffer_load_dwordx4 {pat}, s[{srd}:{srd+3}], {soff} offen nt lds")
    def term_setup(self):
        A = self.A
        A("v_lshrrev_b32 v19, 3, v0\nv_and_b32 v18, 7, v0\nv_lshlrev_b32 v18, 4, v18")
        A("v_mul_u32_u24 v5, 1152, v19\nv_add_u32 v5, v5, v18")
        self.srd(52, 20, 0); self.srd(56, 20, 0); self.srd(60, 12, 4096*576*2)
        A(f"s_cmp_lt_u32 s2, 252\ns_cselect_b32 s54, {4608*576*2}, 0")
        A(f"s_cmp_ge_u32 s2, 216\ns_cselect_b32 s58, s54, 0")
        A("s_lshl_b32 s72, s2, 4\ns_lshl_b32 s70, s2, 5\ns_sub_u32 s70, s70, %d" % (32*216 - 3456))
        A("s_cmp_lt_u32 s2, 216\ns_cselect_b32 s72, s72, s70")
        A("s_mul_i32 s72, s72, 1152\ns_lshl_b32 s70, s30, 7\ns_add_u32 s72, s72, s70")
        A("s_lshl_b32 s73, s31, 4\ns_add_u32 s73, s73, s32\ns_mul_i32 s73, s73, %d\ns_add_u32 s73, s73, s70" % (16*1152))
        A("s_and_b32 s71, s2, 7\ns_lshl_b32 s71, s71, 5\ns_lshr_b32 s70, s2, 3\ns_add_u32 s71, s71, s70\ns_lshl_b32 s71, s71, 6")
        A(f"s_lshl_b32 s70, s30, 17\ns_add_u32 s70, s70, s71\ns_add_u32 s70, s70, {WS_X3}")
        A("s_add_u32 s74, s28, s70\ns_addc_u32 s75, s29, 0")
        A("v_and_b32 v19, 7, v0\nv_lshlrev_b32 v14, 14, v19\nv_lshrrev_b32 v18, 4, v0\nv_lshl_add_u32 v14, v18, 4, v14")
    def ld_term(self, kind, t):
        A = self.A
        if kind == "w2":
            reg = {0:20, 1:24, 2:36, 3:40}[t]; srd = 52 if t < 2 else 56
            A(f"s_add_u32 s70, s72, {t*9216}\nbuffer_load_dwordx4 v[{reg}:{reg+3}], v5, s[{srd}:{srd+3}], s70 offen nt")
        else:
            reg = 28 + 4*t
            A(f"s_add_u32 s70, s73, {t*9216}\nbuffer_load_dwordx4 v[{reg}:{reg+3}], v5, s[60:63], s70 offen nt")

    def stream(self):
        A = self.A; D = self.D; self.vt = "v9"
        if self.diag: self.stamps["s"] = [0]
        self.wq_setup(None)
        A("s_lshl_b32 s70, s30, 17\ns_add_u32 s65, s65, s70")
        A(f"s_lshl_b32 s66, s30, 11\ns_add_u32 s66, s66, {WQB}")
        A("v_lshlrev_b32 v2, 4, v0")
        A("s_waitcnt lgkmcnt(0)")
        self.srd(44, 10, 576*4096*2)
        self.dma("v3", 44, "s65", "s66", "wq")
        A("s_add_u32 s70, s65, 65536\ns_add_u32 s66, s66, 1024")
        self.dma("v3", 44, "s70", "s66", "wq")
        A("s_load_dwordx2 s[34:35], s[28:29], 0")
        A("v_lshrrev_b32 v19, 3, v0\nv_mul_u32_u24 v4, 9216, v19\nv_and_b32 v18, 7, v0\nv_lshl_add_u32 v4, v18, 4, v4")
        A(f"s_mul_hi_u32 s66, s2, {(2**32+71)//72}\ns_mul_i32 s70, s66, 72\ns_sub_u32 s70, s2, s70\ns_min_u32 s66, s66, 2")
        A(f"s_lshl_b32 s70, s70, 7\ns_mul_i32 s71, s66, {192*9216}\ns_add_u32 s67, s70, s71")
        A(f"s_mul_i32 s70, s30, {3*8*9216}\ns_add_u32 s67, s67, s70")
        self.srd(48, 16, 0)
        A(f"s_cmp_lt_u32 s2, 216\ns_cselect_b32 s50, {576*4608*2}, 0")
        A(f"s_mul_i32 s66, s30, 3072\ns_add_u32 s66, s66, {W1B}")
        self.srd(36, 6, 268435456); self.srd(40, 8, 268435456)
        A(f"s_lshl_b32 s68, s31, 24\ns_lshl_b32 s70, s32, 16\ns_add_u32 s68, s68, s70\ns_add_u32 s68, s68, {61440*256}")
        A(f"s_mul_i32 s69, s2, {self.rot}\ns_add_u32 s69, s69, s30\ns_lshl_b32 s69, s69, 10")
        A(f"s_lshl_b32 s78, s30, 10\ns_add_u32 s78, s78, {KB}")
        A("s_and_b32 s70, s30, 3\ns_lshl_b32 s70, s70, 2\nv_lshrrev_b32 v19, 4, v0\nv_and_b32 v18, 15, v0")
        A("v_add_u32 v17, s70, v19\nv_xor_b32 v17, v17, v18\nv_lshlrev_b32 v17, 4, v17\nv_lshl_add_u32 v6, v19, 8, v17")
        def ld_w1(j):
            def f():
                A(f"s_add_u32 s70, s67, {j*8*9216}\ns_add_u32 s71, s66, {j*1024}")
                self.dma("v4", 48, "s70", "s71", "w1")
            return f
        def kvoff(j): A(f"s_add_u32 s70, s69, {j*8192}\ns_and_b32 s70, s70, 0xffff\ns_add_u32 s70, s70, s68")
        def ld_k(j):
            def f():
                kvoff(j); A(f"s_add_u32 s71, s78, {j*8192}")
                self.dma("v6", 36, "s70", "s71", "k")
            return f
        def ld_v(j):
            def f():
                kvoff(j); A(f"buffer_load_dwordx4 v[{44+4*j}:{47+4*j}], v2, s[40:43], s70 offen nt")
            return f
        T = lambda k, t: (lambda: self.ld_term(k, t))
        loads = [None, None] + [ld_w1(j) for j in range(3)] + [ld_k(j) for j in range(8)] + [ld_v(j) for j in range(8)] \
              + [T("w2",0), T("w2",1), T("wo",0), T("wo",1)]
        N = len(loads); issued = 2
        if self.early23:
            while issued < D: loads[issued](); issued += 1
        A("s_barrier")
        while issued < D: loads[issued](); issued += 1
        self.term_setup()
        self.masks_w()
        A("v_and_b32 v17, 1, v0\nv_lshlrev_b32 v17, 4, v17\nv_mov_b32 v18, 0xffff\nv_lshlrev_b32 v18, v17, v18\nv_bfe_u32 v17, v0, 1, 2")
        for j in range(4):
            A(f"v_cmp_eq_u32 vcc, {j}, v17\ns_nop 1\nv_cndmask_b32 v{116+j}, 0, v18, vcc")
        A(f"v_bfe_u32 v17, v0, 3, 1\nv_lshlrev_b32 v17, 10, v17\nv_lshrrev_b32 v18, 4, v0\nv_lshl_add_u32 v16, v18, 2, v17\ns_lshl_b32 s70, s30, 4\ns_add_u32 s70, s70, {PBUF}\nv_add_u32 v16, s70, v16")
        PV0 = self.PV0
        for i in range(0, 21):
            A(f"s_waitcnt vmcnt({issued - 1 - i})")
            if i in (self.IA, self.FB1, self.IB, 17):
                sk = self.lab("prog")
                A(f"s_cmp_lg_u32 s30, 0\ns_cbranch_scc1 {sk}")
                self.lds_setv(F_PROG, i)
                A(f"{sk}:")
            if self.so and i in (1, 4, 8, 16): self.stamp("s", {1:10, 4:11, 8:12, 16:13}[i])
            if i == 1: self.lds_inc(CNT_WQ)
            if i == 4: self.lds_inc(CNT_W1)
            if i == 12:
                self.lds_inc(CNT_K); self.stamp("s", 2)
            if i == 20:
                self.stamp("s", 5)
                A(f"v_mfma_f32_16x16x32_bf16 v[120:123], v[{76+28}:{79+28}], v[{44+28}:{47+28}], v[120:123]")
                A("s_lshl_b32 s70, s30, 10\nv_lshl_add_u32 v17, v0, 4, s70\ns_nop 5")
                A(f"ds_write_b128 v17, v[120:123] offset:{ACCO}")
                self.lds_inc(CNT_O)
                if not self.so: self.stamp("s", 6)
                while issued < N: loads[issued](); issued += 1
                break
            tgt = min(N, i + 1 + D)
            while issued < tgt:
                loads[issued](); issued += 1
            if i == PV0:
                self.spin(CNT_L, 4)
                self.tagfix()
                for t in range(8): A(f"ds_read_b32 v{108+t}, v16 offset:{128*t}")
                A("s_waitcnt lgkmcnt(0)")
                for t in range(8):
                    for j in range(4): A(f"v_and_b32 v{76+4*t+j}, v{116+j}, v{108+t}")
                A("s_nop 1")
                for t in range(0, i - 13 + 1):
                    c = "0" if t == 0 else "v[120:123]"
                    A(f"v_mfma_f32_16x16x32_bf16 v[120:123], v[{76+4*t}:{79+4*t}], v[{44+4*t}:{47+4*t}], {c}")
                if not self.so: self.stamp("s", 4)
            if PV0 < i <= 19:
                t = i - 13
                A(f"v_mfma_f32_16x16x32_bf16 v[120:123], v[{76+4*t}:{79+4*t}], v[{44+4*t}:{47+4*t}], v[120:123]")
        A("L_term:")
        A("s_cmp_lt_u32 s2, 216\ns_cbranch_scc1 L_term_a\ns_cmp_ge_u32 s2, 252\ns_cbranch_scc1 L_term_a")
        self.ld_term("w2", 2); self.ld_term("w2", 3)
        A("s_branch L_term_b\nL_term_a:")
        for r in range(36, 44): A(f"v_mov_b32 v{r}, 0")
        A("L_term_b:")
        self.spin(F_H, 1)
        for t in range(4): A(f"ds_read_b32 v{112+t}, v15 offset:{HBUF + 32*t}")
        A("s_waitcnt lgkmcnt(0)")
        for t in range(4):
            for j in range(4): A(f"v_and_b32 v{76+4*t+j}, v{10+j}, v{112+t}")
        A("s_waitcnt vmcnt(0)")
        self.lds_inc(CNT_E)
        self.stamp("s", 34)
        A("v_mfma_f32_16x16x32_bf16 v[124:127], v[76:79], v[20:23], 0")
        A("v_mfma_f32_16x16x32_bf16 v[124:127], v[80:83], v[24:27], v[124:127]")
        A("v_mfma_f32_16x16x32_bf16 v[124:127], v[84:87], v[36:39], v[124:127]")
        A("v_mfma_f32_16x16x32_bf16 v[124:127], v[88:91], v[40:43], v[124:127]")
        A("v_mov_b32 v110, s34\nv_mov_b32 v111, s35")
        self.spin(F_O, 1, sleep=self.fast)
        if not self.so: self.stamp("s", 8)
        A(f"ds_read_b32 v112, v15 offset:{OBUF}\nds_read_b32 v113, v15 offset:{OBUF+32}\ns_waitcnt lgkmcnt(0)")
        for n in range(2):
            for j in range(4): A(f"v_and_b32 v{92+4*n+j}, v{10+j}, v{112+n}")
        A("s_nop 1")
        A("v_mfma_f32_16x16x32_bf16 v[124:127], v[92:95], v[28:31], v[124:127]")
        A("v_mfma_f32_16x16x32_bf16 v[124:127], v[96:99], v[32:35], v[124:127]")
        self.extract_E(124, "v108", "v109")
        self.exec_n8()
        if not self.so: A("global_store_dwordx4 v14, v[108:111], s[74:75] sc1")
        if not self.so: self.stamp("s", 9)
        A("s_cmp_ge_u32 s2, 72\ns_cbranch_scc1 L_term_end")
        if self.so:
            pass
        elif self.mw3:
            A("s_cmp_ge_u32 s30, 8\ns_cbranch_scc1 L_term_end")
            A("s_mov_b64 exec, -1")
            A(f"s_lshl_b32 s70, s2, 14\ns_lshl_b32 s71, s30, 11\ns_add_u32 s70, s70, s71\ns_add_u32 s70, s70, {WS_X3}\ns_add_u32 s74, s28, s70\ns_addc_u32 s75, s29, 0")
            A(f"v_and_b32 v17, 3, v0\nv_lshlrev_b32 v17, 6, v17\ns_lshl_b32 s71, s30, 3\nv_add_u32 v17, s71, v17")
            if self.slp3: A(f"s_sleep {self.slp3}")
            else: A("s_waitcnt vmcnt(0)")
            r = self.gather_begin("x3")
            A("global_load_dwordx4 v[20:23], v2, s[74:75] sc1\nglobal_load_dwordx4 v[24:27], v2, s[74:75] offset:1024 sc1\ns_waitcnt vmcnt(0)")
            self.gather_check([22, 26], r)
            A("v_add_f32 v20, v20, v24\nv_add_f32 v21, v21, v25\ns_nop 0")
            self.allreduce2("v_add_f32", "v20", "v21", "v22", "v23", (4, 8))
            A(f"s_mov_b64 exec, 0xf\nds_write_b64 v17, v[20:21] offset:{RED}")
            self.lds_inc(CNT_T)
        else:
            A("s_waitcnt vmcnt(0)")
            self.lds_inc(CNT_T)
        A("L_term_end:")
        self.flush_stamps("s", only=0)
        self.flush_stamps("s", only=7, remap={0:21, 2:23, 4:25, 5:26, 6:27, 34:35, 8:29, 9:30, 10:14, 11:15, 12:16, 13:17} if self.so else {0:21, 2:23, 4:25, 5:26, 6:27, 34:35, 8:29, 9:30})
        A("s_endpgm")

    def stage1(self, ldsbase_sreg, xrow_sreg, acc, cnt):
        A = self.A
        A(f"v_add_u32 v16, {ldsbase_sreg}, v2\nv_add_u32 v17, {xrow_sreg}, v15")
        for n in range(6):
            A(f"ds_read_b32 v{68+n}, v17 offset:{XBUF + 32*n}")
        for n in range(6):
            A(f"ds_read_b128 v[{20+4*n}:{23+4*n}], v16 offset:{1024*n}")
        A("s_waitcnt lgkmcnt(6)")
        for n in range(6):
            for j in range(4): A(f"v_and_b32 v{44+4*n+j}, v{10+j}, v{68+n}")
        A("s_waitcnt lgkmcnt(0)")
        for n in range(6):
            c = "0" if n == 0 else "v[76:79]"
            A(f"v_mfma_f32_16x16x32_bf16 v[76:79], v[{44+4*n}:{47+4*n}], v[{20+4*n}:{23+4*n}], {c}")
        A("s_lshl_b32 s71, s71, 8\nv_add_u32 v17, s71, v14")
        self.extract_E(76, "v80", "v81")
        self.exec_n8()
        A(f"ds_write_b64 v17, v[80:81] offset:{acc}")
        self.lds_inc(cnt)

    def xwave(self):
        A = self.A; self.vt = "v9"
        A("L_x:")
        A("s_sub_u32 s30, s30, 10")
        A("v_lshlrev_b32 v2, 4, v0")
        self.wq_setup(None)
        A("s_waitcnt lgkmcnt(0)")
        A("s_load_dwordx2 s[34:35], s[28:29], 0")
        A("s_cmp_lg_u32 s30, 0\ns_cbranch_scc1 L_x_nold")
        self.srd(44, 10, 576*4096*2)
        A(f"s_add_u32 s65, s65, {16*65536}\ns_mov_b32 s66, {WQB + 16*1024}")
        self.dma("v3", 44, "s65", "s66")
        A(f"s_add_u32 s70, s65, 65536\ns_mov_b32 s66, {WQB + 17*1024}")
        self.dma("v3", 44, "s70", "s66")
        A("L_x_nold:")
        if self.touch:
            sk = self.lab("notouch")
            A(f"s_cmp_lg_u32 s30, 3\ns_cbranch_scc1 {sk}")
            A(f"s_lshl_b32 s70, s31, 24\ns_lshl_b32 s71, s32, 16\ns_add_u32 s70, s70, s71\ns_add_u32 s70, s70, {61440*256}")
            A("s_add_u32 s48, s8, s70\ns_addc_u32 s49, s9, 0\ns_load_dword s56, s[48:49], 0")
            if self.touch > 1:
                A("s_add_u32 s48, s6, s70\ns_addc_u32 s49, s7, 0\ns_load_dword s62, s[48:49], 0")
            A("s_lshl_b32 s70, s31, 4\ns_add_u32 s70, s70, s32\ns_mul_i32 s70, s70, %d\ns_add_u32 s48, s12, s70\ns_addc_u32 s49, s13, 0\ns_load_dword s57, s[48:49], 0" % (16*1152))
            A("s_lshl_b32 s70, s2, 4\ns_lshl_b32 s71, s2, 5\ns_sub_u32 s71, s71, %d\ns_cmp_lt_u32 s2, 216\ns_cselect_b32 s70, s70, s71\ns_min_u32 s70, s70, 4600" % (32*216 - 3456))
            A("s_mul_i32 s70, s70, 1152\ns_add_u32 s48, s20, s70\ns_addc_u32 s49, s21, 0\ns_load_dword s58, s[48:49], 0")
            A(f"s_load_dword s59, s[28:29], {WS_XH}")
            A(f"s_add_u32 s48, s28, {WS_X2}\ns_addc_u32 s49, s29, 0\ns_load_dword s60, s[48:49], 0")
            A(f"s_add_u32 s48, s28, {WS_ALT}\ns_addc_u32 s49, s29, 0\ns_load_dword s61, s[48:49], 0")
            A(f"{sk}:")
        A("s_barrier")
        if self.so: A("s_endpgm")
        self.masks_w()
        A("v_and_b32 v19, 7, v0\nv_lshlrev_b32 v14, 5, v19\nv_lshrrev_b32 v18, 4, v0\nv_lshl_add_u32 v14, v18, 3, v14")
        A("s_cmp_lg_u32 s30, 0\ns_cbranch_scc1 L_x_q")
        A("s_waitcnt vmcnt(0)")
        self.lds_inc(CNT_WQ)
        A("s_branch L_x_h")
        A("L_x_q:")
        A(f"s_sub_u32 s71, s30, 1\ns_mul_i32 s66, s71, 6144\ns_add_u32 s66, s66, {WQB}")
        A("s_mul_i32 s67, s64, 576\ns_mul_i32 s70, s71, 192\ns_add_u32 s67, s67, s70")
        self.spin(F_X, 1)
        self.spin(CNT_WQ, 9)
        self.stage1("s66", "s67", ACCQ, CNT_Q)
        self.stamp("x", 22)
        A("L_x_h:")
        A("s_cmp_ge_u32 s2, 216\ns_cbranch_scc1 L_x_qk")
        A(f"s_mul_i32 s66, s30, 6144\ns_add_u32 s66, s66, {W1B}")
        A(f"s_mul_hi_u32 s67, s2, {(2**32+71)//72}\ns_mul_i32 s67, s67, 768\ns_mul_i32 s70, s30, 192\ns_add_u32 s67, s67, s70")
        self.spin(F_X, 1)
        self.spin(CNT_W1, 8)
        A("s_mov_b32 s71, s30")
        self.stage1("s66", "s67", ACCH, CNT_H)
        A("L_x_qk:")
        A("v_and_b32 v18, 15, v0\nv_lshrrev_b32 v19, 4, v0")
        A(f"v_lshlrev_b32 v17, 4, v19\nv_lshl_add_u32 v4, v18, 5, v17\nv_add_u32 v4, {QBUF}, v4\nv_mov_b32 v5, {ZERO}")
        A("v_and_b32 v3, 7, v18\nv_cmp_eq_u32 vcc, 0, v3\ns_nop 1\nv_cndmask_b32 v3, v5, v4, vcc")
        A("v_subrev_u32 v4, 128, v4\nv_and_b32 v17, 7, v18\nv_cmp_eq_u32 vcc, 4, v17\ns_nop 1\nv_cndmask_b32 v4, v5, v4, vcc")
        A(f"s_lshl_b32 s71, s30, 14\ns_add_u32 s71, s71, {KB}\nv_lshl_add_u32 v5, v18, 8, s71")
        for j in range(4):
            A(f"v_add_u32 v17, {4*j}, v19\nv_xor_b32 v17, v17, v18\nv_lshl_add_u32 v{68+j}, v17, 4, v5")
        A(f"v_lshrrev_b32 v7, 5, v0\nv_lshlrev_b32 v6, 10, v7\nv_lshlrev_b32 v7, 2, v7\nv_and_b32 v17, 31, v0\nv_lshl_add_u32 v6, v17, 2, v6")
        A(f"s_lshl_b32 s71, s30, 8\ns_add_u32 s71, s71, {PBUF}\nv_add_u32 v6, s71, v6")
        A("v_mov_b32 v124, v68\nv_mov_b32 v125, v69\nv_mov_b32 v126, v70\nv_mov_b32 v127, v71")
        self.spin(CNT_K, 8)
        for T in range(4):
            for j in range(4):
                r = 52 + 16*T + 4*j
                A(f"ds_read_b128 v[{r}:{r+3}], v{124+j} offset:{4096*T}")
        self.spin(F_Q, 1)
        self.tagfix()
        for j in range(4): A(f"ds_read_b128 v[{20+4*j}:{23+4*j}], v3 offset:{64*j}")
        for j in range(4): A(f"ds_read_b128 v[{36+4*j}:{39+4*j}], v4 offset:{64*j}")
        A("s_waitcnt lgkmcnt(0)")
        for ch in range(2):
            Dr = 116 + 4*ch
            for j in range(4):
                c = "0" if j == 0 else f"v[{Dr}:{Dr+3}]"
                r = 52 + 32*ch + 4*j
                A(f"v_mfma_f32_16x16x32_bf16 v[{Dr}:{Dr+3}], v[{20+4*j}:{23+4*j}], v[{r}:{r+3}], {c}")
            for j in range(4):
                r = 52 + 32*ch + 16 + 4*j
                A(f"v_mfma_f32_16x16x32_bf16 v[{Dr}:{Dr+3}], v[{36+4*j}:{39+4*j}], v[{r}:{r+3}], v[{Dr}:{Dr+3}]")
        A("s_nop 7")
        for v in ("v116", "v120"):
            self.rnd(v, v); A(f"v_mul_f32 {v}, {SCALE:#x}, {v}"); self.rnd(v, v)
        A("v_max_f32 v117, v116, v120")
        self.allreduce("v_max_f32", "v117", "v118", s32=False)
        A("s_mov_b32 exec_lo, 1\ns_mov_b32 exec_hi, 1")
        A(f"ds_max_f32 v7, v117 offset:{MX}")
        self.lds_inc(CNT_M)
        self.spin(CNT_M, 4, sleep=self.fast)
        A(f"ds_read_b32 v117, v7 offset:{MX}\ns_waitcnt lgkmcnt(0)")
        A(f"v_sub_f32 v116, v116, v117\nv_sub_f32 v120, v120, v117\nv_mul_f32 v116, {LOG2E:#x}, v116\nv_mul_f32 v120, {LOG2E:#x}, v120")
        A("v_exp_f32 v116, v116\nv_exp_f32 v120, v120\ns_nop 0")
        A("v_cvt_pk_bf16_f32 v118, v116, v116\nv_cvt_pk_bf16_f32 v119, v120, v120\nv_add_f32 v116, v116, v120")
        A("ds_write_b32 v6, v118\nds_write_b32 v6, v119 offset:128")
        self.allreduce("v_add_f32", "v116", "v117", s32=False)
        A("s_mov_b32 exec_lo, 1\ns_mov_b32 exec_hi, 1")
        A(f"s_lshl_b32 s70, s30, 2\nv_lshl_add_u32 v17, v7, 2, s70\nds_write_b32 v17, v116 offset:{LW}")
        self.lds_inc(CNT_L)
        self.stamp("x", 24)
        A("s_cmp_eq_u32 s30, 0\ns_cbranch_scc1 L_t8")
        A("L_x_end:")
        self.flush_stamps("x", only=1)
        A("s_endpgm")
        A("L_t8:")
        A("s_mov_b32 s30, 8")
        self.term_setup()
        self.spin(F_PROG, 17)
        for k, t in (("w2",0), ("w2",1), ("wo",0), ("wo",1)): self.ld_term(k, t)
        A("s_branch L_term")

    def c1(self):
        A = self.A; self.vt = "v19"
        A("L_c1:")
        if self.prio: A("s_setprio 3")
        A("v_lshlrev_b32 v2, 2, v0")
        A("s_waitcnt lgkmcnt(0)")
        self.srd(36, 4, 1152)
        for k in range(5): A(f"buffer_load_dword v{10+k}, v2, s[36:39], 0 offen offset:{256*k}")
        A("s_load_dwordx2 s[34:35], s[28:29], 0")
        A("s_barrier")
        if self.so: A("s_endpgm")
        A("s_waitcnt vmcnt(0)")
        for k in range(5):
            A(f"v_lshlrev_b32 v{20+2*k}, 16, v{10+k}\nv_and_b32 v{21+2*k}, 0xffff0000, v{10+k}")
        self.tree_sum([20,21,22,23,24,25,26,27,28,29][:0] or [], 1)
        A("v_add_f32 v30, v20, v21\nv_add_f32 v31, v22, v23\nv_add_f32 v42, v24, v25\nv_add_f32 v43, v26, v27\nv_add_f32 v44, v28, v29")
        A("v_add_f32 v30, v30, v31\nv_add_f32 v42, v42, v43\nv_add_f32 v30, v30, v44\nv_add_f32 v30, v30, v42")
        self.allreduce("v_add_f32", "v30", "v31")
        A(f"v_mul_f32 v30, {INV576:#x}, v30")
        A("v_cmp_gt_u32 vcc, 32, v0")
        for k in range(10): A(f"v_sub_f32 v{32+k}, v{20+k}, v30")
        A("v_cndmask_b32 v40, 0, v40, vcc\nv_cndmask_b32 v41, 0, v41, vcc")
        A("v_mul_f32 v31, v32, v32\nv_mul_f32 v42, v33, v33")
        for k in range(34, 42, 2): A(f"v_fmac_f32 v31, v{k}, v{k}\nv_fmac_f32 v42, v{k+1}, v{k+1}")
        A("v_add_f32 v31, v31, v42")
        self.allreduce("v_add_f32", "v31", "v42")
        A(f"v_mul_f32 v31, {INV576:#x}, v31")
        self.rnd("v30", "v30"); self.rnd("v31", "v31")
        A(f"v_add_f32 v31, {EPS:#x}, v31"); self.rnd("v31", "v31")
        A("v_sqrt_f32 v31, v31\ns_nop 0"); self.rnd("v31", "v31")
        A("v_rcp_f32 v31, v31")
        for k in range(10): A(f"v_sub_f32 v{32+k}, v{20+k}, v30")
        for k in range(10): A(f"v_cvt_pk_bf16_f32 v{32+k}, v{32+k}, v{32+k}")
        for k in range(10): A(f"v_and_b32 v{32+k}, 0xffff0000, v{32+k}")
        for k in range(10): A(f"v_mul_f32 v{32+k}, v{32+k}, v31")
        for k in range(10): A(f"v_cvt_pk_bf16_f32 v{32+k}, v{32+k}, v{32+k}")
        A("v_lshlrev_b32 v3, 3, v0")
        for k in range(4): A(f"ds_write_b64 v3, v[{32+2*k}:{33+2*k}] offset:{XBUF + 512*k}")
        A(f"s_mov_b32 exec_hi, 0\nds_write_b64 v3, v[40:41] offset:{XBUF + 2048}\ns_mov_b64 exec, -1")
        self.lds_inc(F_X)
        A("s_waitcnt lgkmcnt(0)")
        self.tagfix()
        self.stamp("c1", 10)
        A(f"s_lshl_b32 s70, s31, 13\ns_add_u32 s70, s70, {WS_X1}\ns_add_u32 s40, s28, s70\ns_addc_u32 s41, s29, 0")
        A("s_lshl_b32 s70, s64, 11\ns_lshl_b32 s71, s33, 9\ns_add_u32 s70, s70, s71")
        A("v_lshlrev_b32 v4, 4, v0\nv_add_u32 v5, s70, v4")
        A("v_mov_b32 v46, s34\nv_mov_b32 v47, s35")
        A("s_getreg_b32 s79, hwreg(HW_REG_XCC_ID, 0, 4)")
        A(f"s_mul_i32 s70, s31, {8192-256}\ns_sub_u32 s78, {WS_XI - WS_X1}, s70")
        A("v_and_b32 v6, 15, v0\nv_lshlrev_b32 v6, 4, v6\nv_add_u32 v6, s78, v6")
        A("s_lshl_b32 s70, s32, 4\ns_add_u32 s78, s78, s70")
        self.spin(CNT_Q, 3)
        for w in range(3): A(f"ds_read_b64 v[{48+2*w}:{49+2*w}], v3 offset:{ACCQ + 256*w}")
        A("s_waitcnt lgkmcnt(0)\nv_add_f32 v44, v48, v50\nv_add_f32 v45, v49, v51\nv_add_f32 v44, v44, v52\nv_add_f32 v45, v45, v53")
        A("s_mov_b32 exec_lo, 0\ns_mov_b32 exec_hi, 1\nv_mov_b32 v44, s79\nv_mov_b32 v45, 0\nv_mov_b32 v5, s78\ns_mov_b32 exec_lo, -1")
        if self.dual1:
            A(f"s_add_u32 s42, s40, {WS_ALT}\ns_addc_u32 s43, s41, 0")
            A("global_store_dwordx4 v5, v[44:47], s[42:43]")
        A("global_store_dwordx4 v5, v[44:47], s[40:41] sc1\ns_mov_b64 exec, -1")
        self.stamp("c1", 11)
        A("v_add_u32 v5, 4096, v4")
        self.spin(F_PROG, self.IA)
        self.hint(40, [512*p + 31*16 + 8 for p in range(16)], 48)
        self.stamp("c1", 36)
        if self.dual1: A("s_mov_b32 s48, s42\ns_mov_b32 s49, s43")
        else: A("s_mov_b32 s48, s40\ns_mov_b32 s49, s41")
        r = self.gather_begin("x1")
        for rg in range(4):
            for h in range(2):
                off = rg*2048 + h*1024; reg = 48 + 4*(2*rg + h)
                A(f"global_load_dwordx4 v[{reg}:{reg+3}], {'v4' if off < 4096 else 'v5'}, s[48:49] offset:{off % 4096} sc1")
        A("global_load_dwordx4 v[80:83], v6, s[48:49] sc1")
        A("s_waitcnt vmcnt(0)")
        for n, rr in enumerate([48 + 4*i + 2 for i in range(8)] + [82]):
            if n == 0: A(f"v_cmp_ne_u64 s[76:77], s[34:35], v[{rr}:{rr+1}]")
            else: A(f"v_cmp_ne_u64 vcc, s[34:35], v[{rr}:{rr+1}]\ns_or_b64 s[76:77], s[76:77], vcc")
        ok = self.lab("x1ok"); nofb = self.lab("x1nofb")
        if 'chk' not in self.off:
            A(f"s_cmp_eq_u64 s[76:77], 0\ns_cbranch_scc1 {ok}")
            if self.dual1:
                A(f"ds_read_b32 v19, v1 offset:{F_PROG}\ns_waitcnt lgkmcnt(0)\nv_readfirstlane_b32 s80, v19\ns_cmp_lt_u32 s80, {self.FB1}\ns_cbranch_scc1 {nofb}")
                A(f"s_mov_b32 s48, s40\ns_mov_b32 s49, s41\n{nofb}:")
            A(f"s_add_u32 s81, s81, 1\ns_cmp_lt_u32 s81, {POLL_LIMIT}\ns_cbranch_scc1 {r}\ns_endpgm\n{ok}:")
        A("v_readfirstlane_b32 s70, v80\ns_nop 1\nv_cmp_ne_u32 vcc, s70, v80\ns_cmp_eq_u64 vcc, 0\ns_cselect_b32 s79, %d, 0" % (1 if self.fastx2 else 0))
        for h in range(2):
            for e in range(2):
                b = 48 + 4*h + e
                A(f"v_add_f32 v{b}, v{b}, v{b+8}\nv_add_f32 v{b+16}, v{b+16}, v{b+24}\nv_add_f32 v{b}, v{b}, v{b+16}")
        A("v_cvt_pk_bf16_f32 v48, v48, v49\nv_cvt_pk_bf16_f32 v52, v52, v53")
        A(f"ds_write_b32 v2, v48 offset:{QBUF}\nds_write_b32 v2, v52 offset:{QBUF+256}")
        self.lds_inc(F_Q)
        self.stamp("c1", 12)
        A(f"s_lshl_b32 s70, s31, 16\ns_add_u32 s70, s70, {WS_X2}\ns_add_u32 s44, s28, s70\ns_addc_u32 s45, s29, 0")
        A("v_lshrrev_b32 v7, 5, v0\nv_lshlrev_b32 v7, 15, v7\nv_bfe_u32 v6, v0, 1, 3\nv_lshl_add_u32 v7, v6, 12, v7")
        A("v_and_b32 v6, 1, v0\nv_lshl_add_u32 v7, v6, 6, v7\nv_bfe_u32 v6, v0, 4, 1\nv_lshl_add_u32 v7, v6, 5, v7")
        A("s_lshl_b32 s70, s32, 7\nv_add_u32 v7, s70, v7")
        A("v_and_b32 v6, 15, v0\nv_lshlrev_b32 v9, 12, v6\ns_lshl_b32 s70, s32, 4\ns_add_u32 s70, s70, 2048\nv_add_u32 v9, s70, v9")
        A("v_lshrrev_b32 v6, 3, v6\nv_lshlrev_b32 v10, 2, v6\nv_lshlrev_b32 v11, 4, v6")
        A("v_mov_b32 v50, s34\nv_mov_b32 v51, s35\nv_mov_b32 v54, s34\nv_mov_b32 v55, s35\nv_mov_b32 v58, s34\nv_mov_b32 v59, s35")
        A("s_lshl_b32 s70, s32, 12\ns_add_u32 s46, s44, s70\ns_addc_u32 s47, s45, 0")
        A("v_lshrrev_b32 v8, 3, v0\nv_lshlrev_b32 v8, 4, v8\nv_add_u32 v8, 2048, v8")
        self.spin(CNT_L, 4)
        A(f"ds_read_b32 v56, v10 offset:{MX}\nds_read_b128 v[60:63], v11 offset:{LW}\ns_waitcnt lgkmcnt(0)")
        A("v_add_f32 v60, v60, v61\nv_add_f32 v62, v62, v63\nv_add_f32 v57, v60, v62")
        self.spin(CNT_O, 8, sleep=self.fast)
        self.stamp("c1", 31)
        for w in range(8): A(f"ds_read_b128 v[{76+4*w}:{79+4*w}], v4 offset:{ACCO + 1024*w}")
        A("s_waitcnt lgkmcnt(0)")
        self.tree_sum([76+4*w for w in range(8)], 4)
        A("v_mov_b32 v48, v76\nv_mov_b32 v49, v77\nv_mov_b32 v52, v78\nv_mov_b32 v53, v79")
        slow = self.lab("x2slow"); pub = self.lab("x2pub")
        A(f"s_cmp_eq_u32 s79, 0\ns_cbranch_scc1 {slow}")
        A("global_store_dwordx4 v7, v[48:51], s[44:45]\nglobal_store_dwordx4 v7, v[52:55], s[44:45] offset:16")
        A("s_mov_b64 exec, 0xffff\nglobal_store_dwordx4 v9, v[56:59], s[44:45]\ns_mov_b64 exec, -1")
        A(f"s_branch {pub}\n{slow}:")
        A("global_store_dwordx4 v7, v[48:51], s[44:45] sc1\nglobal_store_dwordx4 v7, v[52:55], s[44:45] offset:16 sc1")
        A("s_mov_b64 exec, 0xffff\nglobal_store_dwordx4 v9, v[56:59], s[44:45] sc1\ns_mov_b64 exec, -1")
        if self.KE: self.spin(CNT_E, self.KE, sleep=self.fast)
        A(f"{pub}:")
        self.stamp("c1", 14)
        def x2round(b):
            A(f"global_load_dwordx4 v[{b}:{b+3}], v4, s[46:47] sc1\nglobal_load_dwordx4 v[{b+4}:{b+7}], v4, s[46:47] offset:1024 sc1")
            A(f"global_load_dwordx4 v[{b+8}:{b+11}], v8, s[46:47] sc1\nglobal_load_dwordx4 v[{b+12}:{b+15}], v8, s[46:47] offset:128 sc1")
        def x2chk(b, ok):
            A(f"v_cmp_ne_u64 s[76:77], s[34:35], v[{b+2}:{b+3}]\nv_cmp_ne_u64 vcc, s[34:35], v[{b+6}:{b+7}]\ns_or_b64 s[76:77], s[76:77], vcc")
            A(f"v_cmp_ne_u64 vcc, s[34:35], v[{b+10}:{b+11}]\ns_or_b64 s[76:77], s[76:77], vcc\nv_cmp_ne_u64 vcc, s[34:35], v[{b+14}:{b+15}]\ns_or_b64 s[76:77], s[76:77], vcc")
            A(f"s_cmp_eq_u64 s[76:77], 0\ns_cbranch_scc1 {ok}")
        nr = self.nr2
        r = self.gather_begin("x2")
        oks = [self.lab("x2ok") for _ in range(nr)]
        for k in range(nr):
            x2round(60 + 16*k)
            if k < nr - 1: A(f"s_sleep {self.slp2}")
        for k in range(nr):
            A(f"s_waitcnt vmcnt({4*(nr-1-k)})")
            x2chk(60 + 16*k, oks[k])
        A(f"s_add_u32 s81, s81, 1\ns_cmp_lt_u32 s81, {POLL_LIMIT}\ns_cbranch_scc1 {r}\ns_endpgm")
        for k in range(nr - 1, 0, -1):
            A(f"{oks[k]}:")
            for q in (0, 1, 4, 5, 8, 9, 12, 13): A(f"v_mov_b32 v{60+q}, v{60+16*k+q}")
            if k > 1: A(f"s_branch {oks[0]}")
        A(f"{oks[0]}:")
        self.stamp("c1", 33)
        A("v_max_f32 v56, v68, v72")
        self.allreduce("v_max_f32", "v56", "v57", rors=(8,))
        A(f"v_sub_f32 v68, v68, v56\nv_sub_f32 v72, v72, v56\nv_mul_f32 v68, {LOG2E:#x}, v68\nv_mul_f32 v72, {LOG2E:#x}, v72")
        A("v_exp_f32 v68, v68\nv_exp_f32 v72, v72\ns_nop 0")
        A("v_mul_f32 v60, v60, v68\nv_mul_f32 v61, v61, v68\nv_mul_f32 v62, v69, v68")
        A("v_fmac_f32 v60, v64, v72\nv_fmac_f32 v61, v65, v72\nv_fmac_f32 v62, v73, v72")
        A("s_nop 0")
        for v in ("v60", "v61", "v62"): A(f"v_add_f32_dpp {v}, {v}, {v} row_ror:8 row_mask:0xf bank_mask:0xf")
        for which in (16, 32):
            A("v_mov_b32 v56, v60\nv_mov_b32 v57, v61\nv_mov_b32 v58, v62")
            A(f"v_permlane{which}_swap_b32 v60, v56\nv_permlane{which}_swap_b32 v61, v57\nv_permlane{which}_swap_b32 v62, v58")
            A("v_add_f32 v60, v60, v56\nv_add_f32 v61, v61, v57\nv_add_f32 v62, v62, v58")
        A("v_rcp_f32 v62, v62\ns_nop 0\nv_mul_f32 v60, v60, v62\nv_mul_f32 v61, v61, v62")
        A("v_cvt_pk_bf16_f32 v60, v60, v60\nv_cvt_pk_bf16_f32 v61, v61, v61")
        A(f"s_mov_b64 exec, 0xff\nds_write_b64 v3, v[60:61] offset:{OBUF}\ns_mov_b64 exec, -1")
        self.lds_inc(F_O)
        self.stamp("c1", 15)
        self.flush_stamps("c1")
        A("s_endpgm")

    def c2(self):
        A = self.A; self.vt = "v15"
        A("L_c2:")
        if self.prio: A("s_setprio 2")
        A("v_lshlrev_b32 v4, 4, v0\nv_mov_b32 v8, 0\nv_mov_b32 v9, 0\nv_mov_b32 v10, 0\nv_mov_b32 v11, 0")
        A(f"s_mov_b32 exec_hi, 0xffff\nds_write_b128 v4, v[8:11] offset:{ZERO}\ns_mov_b64 exec, -1")
        A(f"v_mov_b32 v8, 0xff800000\nv_mov_b32 v9, 0xff800000\ns_mov_b64 exec, 1\nds_write_b64 v1, v[8:9] offset:{MX}\ns_mov_b64 exec, -1")
        A("s_waitcnt lgkmcnt(0)")
        A("s_load_dwordx2 s[34:35], s[28:29], 0")
        A("s_barrier")
        if self.so: A("s_endpgm")
        A("s_lshl_b32 s72, s2, 4\ns_lshl_b32 s70, s2, 5\ns_sub_u32 s70, s70, %d" % (32*216 - 3456))
        A("s_cmp_lt_u32 s2, 216\ns_cselect_b32 s72, s72, s70\ns_cselect_b32 s73, 7, 15")
        A("v_and_b32 v5, s73, v0")
        self.srd(36, 18, 4608*2)
        A("s_lshl_b32 s70, s72, 1\nv_lshl_add_u32 v6, v5, 2, s70")
        A("buffer_load_dword v12, v6, s[36:39], 0 offen")
        self.srd(40, 4, 1152); self.srd(44, 22, 1152)
        A("v_and_b32 v7, 3, v0\nv_lshlrev_b32 v7, 2, v7\ns_lshl_b32 s70, s2, 4\nv_add_u32 v7, s70, v7")
        A("buffer_load_dword v13, v7, s[40:43], 0 offen\nbuffer_load_dword v14, v7, s[44:47], 0 offen")
        A("v_lshlrev_b32 v3, 3, v0")
        A("s_waitcnt lgkmcnt(0)")
        self.tagfix()
        A("v_mov_b32 v46, s34\nv_mov_b32 v47, s35")
        A(f"s_add_u32 s48, s28, {WS_XH}\ns_addc_u32 s49, s29, 0")
        A("s_cmp_ge_u32 s2, 216\ns_cbranch_scc1 L_c2_nopub")
        A(f"s_mul_hi_u32 s66, s2, {(2**32+71)//72}\ns_mul_i32 s70, s66, 72\ns_sub_u32 s70, s2, s70")
        A("s_mul_i32 s70, s70, 1536\ns_lshl_b32 s71, s66, 9\ns_add_u32 s70, s70, s71\nv_add_u32 v8, s70, v4")
        self.spin(CNT_H, 4)
        for w in range(4): A(f"ds_read_b64 v[{48+2*w}:{49+2*w}], v3 offset:{ACCH + 256*w}")
        A("s_waitcnt lgkmcnt(0)")
        self.tree_sum([48, 50, 52, 54], 2)
        A("v_mov_b32 v44, v48\nv_mov_b32 v45, v49\ns_mov_b32 exec_hi, 0")
        A("global_store_dwordx4 v8, v[44:47], s[48:49] sc1\ns_mov_b64 exec, -1")
        self.stamp("c2", 16)
        A("L_c2_nopub:")
        A("s_cmp_ge_u32 s2, 252\ns_cbranch_scc1 L_c2_hdone")
        A("s_lshr_b32 s70, s72, 6\ns_mul_i32 s70, s70, 1536\ns_and_b32 s71, s72, 63\ns_lshl_b32 s71, s71, 3\ns_add_u32 s70, s70, s71")
        A("v_lshl_add_u32 v8, v5, 4, s70")
        A("s_add_u32 s50, s48, s70\ns_addc_u32 s51, s49, 0")
        self.spin(F_PROG, self.IB)
        self.hint(50, [512*rg + 7*16 + 8 for rg in range(3)], 56)
        r = self.gather_begin("xh")
        for rg in range(3): A(f"global_load_dwordx4 v[{16+4*rg}:{19+4*rg}], v8, s[48:49] offset:{512*rg} sc1")
        A("s_waitcnt vmcnt(0)")
        self.gather_check([18, 22, 26], r)
        for e in range(2):
            A(f"v_add_f32 v{16+e}, v{16+e}, v{20+e}\nv_add_f32 v{16+e}, v{16+e}, v{24+e}")
            self.rnd(f"v{16+e}", f"v{16+e}")
        A("v_lshlrev_b32 v18, 16, v12\nv_and_b32 v19, 0xffff0000, v12")
        for e in range(2):
            A(f"v_add_f32 v{16+e}, v{16+e}, v{18+e}")
            self.rnd(f"v{16+e}", f"v{16+e}")
            A(f"v_cmp_gt_f32 vcc, v{16+e}, 0\ns_nop 1\nv_cndmask_b32 v{16+e}, 0, v{16+e}, vcc")
            A(f"v_mul_f32 v{16+e}, v{16+e}, v{16+e}\nv_cvt_pk_bf16_f32 v{16+e}, v{16+e}, v{16+e}")
        A("v_lshlrev_b32 v8, 3, v5")
        A(f"s_mov_b64 exec, 0xffff\nds_write_b64 v8, v[16:17] offset:{HBUF}\ns_mov_b64 exec, -1")
        A("L_c2_hdone:")
        self.lds_inc(F_H)
        self.stamp("c2", 17)
        A("s_cmp_ge_u32 s2, 72\ns_cbranch_scc1 L_c2_end")
        A(f"s_lshl_b32 s70, s2, 14\ns_add_u32 s70, s70, {WS_X3}\ns_add_u32 s50, s28, s70\ns_addc_u32 s51, s29, 0")
        A("v_add_u32 v5, 4096, v4\nv_add_u32 v6, 8192, v4\nv_add_u32 v8, 12288, v4")
        A("s_waitcnt vmcnt(0)")
        A("v_lshlrev_b32 v16, 16, v13\nv_and_b32 v17, 0xffff0000, v13\nv_lshlrev_b32 v18, 16, v14\nv_and_b32 v19, 0xffff0000, v14")
        A("v_add_f32 v16, v16, v18\nv_add_f32 v17, v17, v19")
        self.srd(52, 24, 1152)
        if self.mw3:
            A("v_and_b32 v5, 3, v0\nv_lshlrev_b32 v5, 6, v5")
            self.spin(CNT_T, 8, sleep=self.fast)
            self.stamp("c2", 19)
            for k in range(4): A(f"ds_read_b128 v[{20+4*k}:{23+4*k}], v5 offset:{RED + 16*k}")
            A("s_waitcnt lgkmcnt(0)")
            self.tree_sum([20+2*k for k in range(8)], 2)
        else:
            self.spin(CNT_T, 9, sleep=self.fast)
            self.stamp("c2", 18)
            r = self.gather_begin("x3")
            bases = ["v4", "v5", "v6", "v8"]
            for i in range(16):
                A(f"global_load_dwordx4 v[{20+4*i}:{23+4*i}], {bases[i//4]}, s[50:51] offset:{(i%4)*1024} sc1")
            A("s_waitcnt vmcnt(0)")
            self.gather_check([20+4*i+2 for i in range(16)], r)
            self.stamp("c2", 19)
            self.tree_sum([20+4*i for i in range(16)], 2)
            A("s_nop 0")
            self.allreduce2("v_add_f32", "v20", "v21", "v22", "v23", (4, 8))
        A("v_add_f32 v20, v20, v16\nv_add_f32 v21, v21, v17\nv_cvt_pk_bf16_f32 v20, v20, v21")
        if self.until:
            A(f"s_add_u32 s78, s78, {self.until}\nL_until:\ns_memrealtime s[70:71]\ns_waitcnt lgkmcnt(0)\ns_cmp_lt_u32 s70, s78\ns_cbranch_scc1 L_until")
        if self.burn:
            A(f"s_mov_b32 s70, {self.burn}\nL_burn:\nv_add_f32 v30, v30, v30\nv_add_f32 v30, v30, v30\nv_add_f32 v30, v30, v30\nv_add_f32 v30, v30, v30\ns_sub_u32 s70, s70, 1\ns_cmp_lg_u32 s70, 0\ns_cbranch_scc1 L_burn")
        A("s_mov_b64 exec, 0xf\nbuffer_store_dword v20, v7, s[52:55], 0 offen")
        A("s_cmp_lg_u32 s2, 0\ns_cbranch_scc1 L_c2_noep")
        A("s_mov_b64 exec, 1\nglobal_store_dwordx2 v1, v[46:47], s[28:29] sc1")
        A("L_c2_noep:")
        self.stamp("c2", 20)
        A("L_c2_end:")
        self.flush_stamps("c2")
        A("s_endpgm")

if __name__ == "__main__":
    import argparse
    ap = argparse.ArgumentParser()
    ap.add_argument("--out", default="v2")
    ap.add_argument("--diag", action="store_true"); ap.add_argument("--dbg", action="store_true")
    ap.add_argument("--D", type=int, default=4); ap.add_argument("--rot", type=int, default=4)
    ap.add_argument("--gmap", default="low"); ap.add_argument("--PV0", type=int, default=18)
    ap.add_argument("--off", default="")
    ap.add_argument("--IA", type=int, default=10); ap.add_argument("--IB", type=int, default=14); ap.add_argument("--KE", type=int, default=1)
    ap.add_argument("--burn", type=int, default=0)
    ap.add_argument("--until", type=int, default=0)
    ap.add_argument("--fastx2", type=int, default=1); ap.add_argument("--early23", type=int, default=0); ap.add_argument("--hint3", type=int, default=0)
    ap.add_argument("--slp3", type=int, default=0)
    ap.add_argument("--mw3", type=int, default=1); ap.add_argument("--slp2", type=int, default=6); ap.add_argument("--nr2", type=int, default=1)
    ap.add_argument("--dual1", type=int, default=1); ap.add_argument("--FB1", type=int, default=12)
    ap.add_argument("--touch", type=int, default=0)
    ap.add_argument("--so", type=int, default=0); ap.add_argument("--nodma", default="")
    ap.add_argument("--sleep", type=int, default=0); ap.add_argument("--spin1", type=int, default=0); ap.add_argument("--fast", type=int, default=0)
    ap.add_argument("--prio", type=int, default=1); ap.add_argument("--hints", type=int, default=0)
    a = ap.parse_args()
    g = G(diag=a.diag, dbg=a.dbg, D=a.D, rot=a.rot, gmap=a.gmap, PV0=a.PV0, prio=a.prio, hints=a.hints, sleep=a.sleep, spin1=a.spin1, fast=a.fast, so=a.so, nodma=a.nodma, off=a.off, IA=a.IA, IB=a.IB, KE=a.KE, burn=a.burn, until=a.until, fastx2=a.fastx2, early23=a.early23, hint3=a.hint3, slp3=a.slp3, mw3=a.mw3, slp2=a.slp2, nr2=a.nr2, dual1=a.dual1, FB1=a.FB1, touch=a.touch)
    asm = g.gen()
    build(asm, a.out)
    print("built", a.out, len(asm), "bytes")
```

```python
import sys
from asmlib import header, kernel_begin, descriptor, build, NAME

XBUF, QBUF, ZERO, HBUF, OBUF, MX = 0, 2304, 2816, 3072, 3200, 3264
CNT = 3280
(F_X, CNT_WQ, CNT_W1, CNT_K, CNT_Q, CNT_H, F_Q, CNT_M, CNT_L, CNT_O, F_H, F_O, CNT_T, F_PROG, CNT_P, CNT_E) = [CNT + 4*i for i in range(16)]
LW = 3392
WBUF = 3456
ACCQ = 3584
ACCH = 4608
PBUF = 5632
RED = 7680
ACCO = 8192
WQB = 16384
W1B = 34816
KB = 59392
LDS_BYTES = 124928
WS_X1 = 0x1000
WS_XH = 0x22000
WS_XS = 0x40000
WS_XI = 0x21000
WS_X2 = 0x280000
WS_X3 = 0x100000
WS_ALT = 0x400000
WS_STAMP = 0x20000000
NSTAMP = 40
SPIN_LIMIT = 1 << 20
POLL_LIMIT = 1 << 16
LOG2E = 0x3fb8aa3b
SCALE = 0x3db504f3
INV576 = 0x3ae38e39
EPS = 0x3727c5ac
NWAVES = 14

class G:
    def __init__(self, diag=False, dbg=False, D=4, rot=4, gmap="low", PV0=18, prio=1, hints=1, sleep=0, spin1=0, fast=0, so=0, nodma='', off='', IA=10, IB=14, IC=0, KE=1, ack3=1, burn=0, until=0, fastx2=1, early23=0, hint3=0, slp3=0, mw3=1, slp2=6, nr2=3, dual1=1, FB1=12, touch=0, mini=0, EX=0, kfirst=0, bo3=0, lateb=0, rb=None, fuse=0, DI=0):
        self.DI = DI
        self.fuse = fuse
        self.rb = rb
        self.lateb = lateb
        self.bo3 = bo3
        self.kfirst = kfirst
        self.mini = mini; self.EX = EX
        self.touch = touch
        self.dual1 = dual1; self.FB1 = FB1
        self.mw3 = mw3; self.slp2 = slp2; self.nr2 = nr2
        self.slp3 = slp3
        self.fastx2 = fastx2; self.early23 = early23; self.hint3 = hint3
        self.burn = burn; self.until = until
        self.sleep = sleep; self.spin1 = spin1; self.fast = fast; self.IA = IA; self.IB = IB; self.IC = IC; self.KE = KE; self.ack3 = ack3; self.so = so; self.nodma = nodma; self.off = set(off.split(','))
        self.L = []; self.diag = diag or dbg; self.dbg = dbg; self.D = D; self.rot = rot; self.gmap = gmap
        self.PV0 = PV0; self.prio = prio; self.hints = hints
        self.nlab = 0; self.stamps = {}; self.vt = 'v9'
    def A(self, s):
        if self.off != {''}:
            out = []
            for line in s.split("\n"):
                if 'st' in self.off and line.startswith("global_store") and "sc1" in line: continue
                if 'ld' in self.off and line.startswith("global_load") and "sc1" in line: continue
                out.append(line)
            s = "\n".join(out)
        self.L.append(s)
    def lab(self, base):
        self.nlab += 1; return f"L_{base}_{self.nlab}"
    def stamp(self, kind, k):
        if not self.diag: return
        if self.mini and k != 20: return
        lst = self.stamps.setdefault(kind, [])
        j = len(lst); assert j < 10; lst.append(k)
        self.A(f"s_memrealtime s[{82+2*j}:{83+2*j}]\ns_waitcnt lgkmcnt(0)")
    def flush_stamps(self, kind, only=None, remap=None):
        if not self.diag: return
        lst = self.stamps.get(kind, [])
        A = self.A; skip = self.lab("nostamp")
        if only is not None: A(f"s_cmp_lg_u32 s30, {only}\ns_cbranch_scc1 {skip}")
        A("s_mov_b64 exec, 1\nv_mov_b32 v1, 0")
        if self.dbg:
            A(f"s_cmp_lg_u32 s2, 0\ns_cbranch_scc1 {skip}")
            rm = {0:1, 10:2, 11:3, 12:4, 2:5, 24:6, 5:7, 14:8, 15:9, 17:10, 9:11, 18:12, 19:13, 20:14, 34:15}
            if remap is None:
                for j, k in enumerate(lst):
                    if k in rm: A(f"v_mov_b32 v2, s{82+2*j}\nglobal_store_dword v1, v2, s[26:27] offset:{4*rm[k]}")
        else:
            A(f"s_add_u32 s72, s28, {WS_STAMP}\ns_addc_u32 s73, s29, 0")
            A(f"s_mul_i32 s70, s2, {NSTAMP*8}\ns_add_u32 s72, s72, s70\ns_addc_u32 s73, s73, 0")
            for j, k in enumerate(lst):
                kk = k if remap is None else remap.get(k)
                if kk is None: continue
                A(f"v_mov_b32 v2, s{82+2*j}\nv_mov_b32 v3, s{83+2*j}\nglobal_store_dwordx2 v1, v[2:3], s[72:73] offset:{8*kk}")
        A(f"{skip}:")
    def spin(self, addr, n, sleep=None):
        if self.so: return
        if sleep is None: sleep = self.sleep
        l = self.lab("spin"); d = self.lab("spun"); vt = self.vt
        one = self.spin1
        if one: self.A("s_mov_b64 exec, 1")
        self.A(f"s_mov_b32 s81, 0\n{l}:\nds_read_b32 {vt}, v1 offset:{addr}\ns_waitcnt lgkmcnt(0)\nv_readfirstlane_b32 s80, {vt}\ns_cmp_ge_u32 s80, {n}\ns_cbranch_scc1 {d}")
        if sleep: self.A(f"s_sleep {sleep}")
        self.A(f"s_add_u32 s81, s81, 1\ns_cmp_lt_u32 s81, {SPIN_LIMIT}\ns_cbranch_scc1 {l}\ns_endpgm\n{d}:")
        if one: self.A("s_mov_b64 exec, -1")
    def spin_with(self, addr, n, reads):
        l = self.lab("spinw"); d = self.lab("spunw"); vt = self.vt
        self.A(f"s_mov_b32 s81, 0\n{l}:\nds_read_b32 {vt}, v1 offset:{addr}")
        for r in reads: self.A(r)
        self.A(f"s_waitcnt lgkmcnt(0)\nv_readfirstlane_b32 s80, {vt}\ns_cmp_ge_u32 s80, {n}\ns_cbranch_scc1 {d}")
        self.A(f"s_add_u32 s81, s81, 1\ns_cmp_lt_u32 s81, {SPIN_LIMIT}\ns_cbranch_scc1 {l}\ns_endpgm\n{d}:")
    def lds_inc(self, addr):
        vt = self.vt
        self.A(f"s_mov_b64 exec, 1\nv_mov_b32 {vt}, 1\nds_add_u32 v1, {vt} offset:{addr}\ns_mov_b64 exec, -1")
    def lds_setv(self, addr, val):
        vt = self.vt
        self.A(f"s_mov_b64 exec, 1\nv_mov_b32 {vt}, {val}\nds_write_b32 v1, {vt} offset:{addr}\ns_mov_b64 exec, -1")
    def rnd(self, dst, src):
        self.A(f"v_cvt_pk_bf16_f32 {dst}, {src}, {src}\nv_and_b32 {dst}, 0xffff0000, {dst}")
    def dpp(self, op, v, ctrl):
        self.A(f"s_nop 1\n{op}_dpp {v}, {v}, {v} {ctrl} row_mask:0xf bank_mask:0xf")
    def swap_red(self, op, v, t, which):
        self.A(f"v_mov_b32 {t}, {v}\ns_nop 1\nv_permlane{which}_swap_b32 {v}, {t}\ns_nop 0\n{op} {v}, {v}, {t}")
    def allreduce(self, op, v, t, rors=(1,2,4,8), s16=True, s32=True):
        for r in rors: self.dpp(op, v, f"row_ror:{r}")
        if s16: self.swap_red(op, v, t, 16)
        if s32: self.swap_red(op, v, t, 32)
    def allreduce2(self, op, va, vb, ta, tb, rors):
        A = self.A
        for r in rors:
            A(f"s_nop 0\n{op}_dpp {va}, {va}, {va} row_ror:{r} row_mask:0xf bank_mask:0xf\n{op}_dpp {vb}, {vb}, {vb} row_ror:{r} row_mask:0xf bank_mask:0xf")
        for which in (16, 32):
            A(f"v_mov_b32 {ta}, {va}\nv_mov_b32 {tb}, {vb}\ns_nop 0\nv_permlane{which}_swap_b32 {va}, {ta}\nv_permlane{which}_swap_b32 {vb}, {tb}\ns_nop 0\n{op} {va}, {va}, {ta}\n{op} {vb}, {vb}, {tb}")
    def tree_sum(self, regs, width):
        regs = list(regs)
        while len(regs) > 1:
            nxt = []
            for i in range(0, len(regs) - 1, 2):
                for e in range(width):
                    self.A(f"v_add_f32 v{regs[i]+e}, v{regs[i]+e}, v{regs[i+1]+e}")
                nxt.append(regs[i])
            if len(regs) % 2: nxt.append(regs[-1])
            regs = nxt
    def srd(self, d, p, n):
        self.A(f"s_mov_b32 s{d}, s{p}\ns_and_b32 s{d+1}, s{p+1}, 0xffff\ns_mov_b32 s{d+2}, {n}\ns_mov_b32 s{d+3}, 0x20000")
    def tagfix(self):
        self.A("s_add_u32 s34, s34, 1\ns_addc_u32 s35, s35, 0")
    def masks_w(self):
        A = self.A
        A("v_and_b32 v19, 15, v0\nv_bfe_u32 v18, v19, 1, 1\nv_lshlrev_b32 v18, 4, v18\nv_mov_b32 v17, 0xffff\nv_lshlrev_b32 v17, v18, v17")
        A("v_lshrrev_b32 v19, 2, v19")
        for j in range(4):
            A(f"v_cmp_eq_u32 vcc, {j}, v19\ns_nop 1\nv_cndmask_b32 v{10+j}, 0, v17, vcc")
        A("v_lshrrev_b32 v18, 4, v0\nv_and_b32 v17, 1, v0\nv_lshl_add_u32 v15, v18, 1, v17\nv_lshlrev_b32 v15, 2, v15")
    def extract_E(self, D, E0, E1):
        self.A("s_nop 7")
        self.A(f"v_add_f32_dpp {E0}, v{D+1}, v{D} row_ror:8 row_mask:0xf bank_mask:0xf")
        self.A(f"v_add_f32_dpp {E1}, v{D+3}, v{D+2} row_ror:8 row_mask:0xf bank_mask:0xf")
    def exec_n8(self):
        self.A("s_mov_b32 exec_lo, 0x00ff00ff\ns_mov_b32 exec_hi, 0x00ff00ff")
    def hint(self, base, offs, r0):
        if not self.hints: return
        A = self.A; l = self.lab("hint"); again = self.lab("hagain"); d = self.lab("hdone")
        A(f"s_mov_b32 s81, 0\n{l}:")
        for i, o in enumerate(offs):
            A(f"s_load_dword s{r0+i}, s[{base}:{base+1}], {o} glc")
        A("s_waitcnt lgkmcnt(0)")
        for i in range(len(offs)):
            A(f"s_cmp_lg_u32 s{r0+i}, s34\ns_cbranch_scc1 {again}")
        A(f"s_branch {d}\n{again}:\ns_add_u32 s81, s81, 1\ns_cmp_lt_u32 s81, {POLL_LIMIT}\ns_cbranch_scc1 {l}\n{d}:")
    def gather_begin(self, base):
        r = self.lab(base); self.A(f"s_mov_b32 s81, 0\n{r}:"); return r
    def gather_check(self, pairs, retry, backoff=0):
        A = self.A
        if 'chk' in self.off: return
        for n, r in enumerate(pairs):
            if n == 0: A(f"v_cmp_ne_u64 s[76:77], s[34:35], v[{r}:{r+1}]")
            else: A(f"v_cmp_ne_u64 vcc, s[34:35], v[{r}:{r+1}]\ns_or_b64 s[76:77], s[76:77], vcc")
        d = self.lab("gok")
        A(f"s_cmp_eq_u64 s[76:77], 0\ns_cbranch_scc1 {d}")
        if backoff: A(f"s_sleep {backoff}")
        A(f"s_add_u32 s81, s81, 1\ns_cmp_lt_u32 s81, {POLL_LIMIT}\ns_cbranch_scc1 {retry}\ns_endpgm\n{d}:")

    def gen(self):
        A = self.A
        A(header([f"grid=(256,1,1) block=({NWAVES*64},1,1) lds={LDS_BYTES}"]))
        A(kernel_begin(NAME))
        A("s_cmp_ge_u32 s2, 256\ns_cbranch_scc1 L_end")
        if self.diag:
            for r in range(84, 102): A(f"s_mov_b32 s{r}, 0")
            A("s_memrealtime s[82:83]")
        if self.until: A("s_memrealtime s[78:79]")
        A("s_load_dwordx16 s[4:19], s[0:1], 0")
        A("s_load_dwordx8 s[20:27], s[0:1], 64")
        A("s_load_dwordx2 s[28:29], s[0:1], 96")
        A("v_lshrrev_b32 v1, 6, v0\nv_and_b32 v0, 63, v0\ns_nop 0\nv_readfirstlane_b32 s30, v1")
        if self.gmap == "low": A("s_and_b32 s31, s2, 15\ns_lshr_b32 s32, s2, 4")
        else: A("s_lshr_b32 s31, s2, 4\ns_and_b32 s32, s2, 15")
        A("v_mov_b32 v1, 0\ns_and_b32 s33, s32, 3\ns_lshr_b32 s64, s32, 2")
        A("s_cmp_eq_u32 s30, 0\ns_cbranch_scc1 L_c1")
        A("s_cmp_eq_u32 s30, 1\ns_cbranch_scc1 L_c2")
        A("s_cmp_ge_u32 s30, 10\ns_cbranch_scc1 L_x")
        A("s_sub_u32 s30, s30, 2")
        self.stream()
        self.xwave()
        self.c1()
        self.c2()
        A("L_end:\ns_endpgm")
        A(descriptor(NAME, 128))
        return "\n".join(self.L) + "\n"

    def wq_setup(self, tile0_expr):
        A = self.A
        A("v_lshrrev_b32 v19, 3, v0\nv_and_b32 v18, 7, v0\nv_lshlrev_b32 v18, 4, v18")
        A("v_lshl_add_u32 v3, v19, 13, v18")
        A(f"s_mul_i32 s65, s64, {144*8192}\ns_lshl_b32 s70, s31, 9\ns_add_u32 s65, s65, s70\ns_lshl_b32 s70, s33, 7\ns_add_u32 s65, s65, s70")
    def dma(self, pat, srd, soff, ldsaddr_sreg, kind=""):
        if kind and kind in self.nodma.split(","):
            self.A(f"buffer_load_dwordx4 v[76:79], {pat}, s[{srd}:{srd+3}], {soff} offen nt"); return
        self.A(f"s_mov_b32 m0, {ldsaddr_sreg}\ns_nop 0\nbuffer_load_dwordx4 {pat}, s[{srd}:{srd+3}], {soff} offen nt lds")
    def term_setup(self):
        A = self.A
        A("v_lshrrev_b32 v19, 3, v0\nv_and_b32 v18, 7, v0\nv_lshlrev_b32 v18, 4, v18")
        A("v_mul_u32_u24 v5, 1152, v19\nv_add_u32 v5, v5, v18")
        self.srd(52, 20, 0); self.srd(56, 20, 0); self.srd(60, 12, 4096*576*2)
        A(f"s_cmp_lt_u32 s2, 252\ns_cselect_b32 s54, {4608*576*2}, 0")
        A(f"s_cmp_ge_u32 s2, 216\ns_cselect_b32 s58, s54, 0")
        A("s_lshl_b32 s72, s2, 4\ns_lshl_b32 s70, s2, 5\ns_sub_u32 s70, s70, %d" % (32*216 - 3456))
        A("s_cmp_lt_u32 s2, 216\ns_cselect_b32 s72, s72, s70")
        A("s_mul_i32 s72, s72, 1152\ns_lshl_b32 s70, s30, 7\ns_add_u32 s72, s72, s70")
        A("s_lshl_b32 s73, s31, 4\ns_add_u32 s73, s73, s32\ns_mul_i32 s73, s73, %d\ns_add_u32 s73, s73, s70" % (16*1152))
        A("s_and_b32 s71, s2, 7\ns_lshl_b32 s71, s71, 5\ns_lshr_b32 s70, s2, 3\ns_add_u32 s71, s71, s70\ns_lshl_b32 s71, s71, 6")
        A(f"s_lshl_b32 s70, s30, 17\ns_add_u32 s70, s70, s71\ns_add_u32 s70, s70, {WS_X3}")
        A("s_add_u32 s74, s28, s70\ns_addc_u32 s75, s29, 0")
        A("v_and_b32 v19, 7, v0\nv_lshlrev_b32 v14, 14, v19\nv_lshrrev_b32 v18, 4, v0\nv_lshl_add_u32 v14, v18, 4, v14")
    def ld_term(self, kind, t):
        A = self.A
        if kind == "w2":
            reg = {0:20, 1:24, 2:36, 3:40}[t]; srd = 52 if t < 2 else 56
            A(f"s_add_u32 s70, s72, {t*9216}\nbuffer_load_dwordx4 v[{reg}:{reg+3}], v5, s[{srd}:{srd+3}], s70 offen nt")
        else:
            reg = 28 + 4*t
            A(f"s_add_u32 s70, s73, {t*9216}\nbuffer_load_dwordx4 v[{reg}:{reg+3}], v5, s[60:63], s70 offen nt")

    def stream(self):
        A = self.A; D = self.D; self.vt = "v9"
        if self.diag: self.stamps["s"] = [0]
        self.wq_setup(None)
        A("s_lshl_b32 s70, s30, 17\ns_add_u32 s65, s65, s70")
        A(f"s_lshl_b32 s66, s30, 11\ns_add_u32 s66, s66, {WQB}")
        A("v_lshlrev_b32 v2, 4, v0")
        A("s_waitcnt lgkmcnt(0)")
        self.srd(44, 10, 576*4096*2)
        self.dma("v3", 44, "s65", "s66", "wq")
        A("s_add_u32 s70, s65, 65536\ns_add_u32 s66, s66, 1024")
        self.dma("v3", 44, "s70", "s66", "wq")
        self.stamp("s", 1)
        A("s_load_dwordx2 s[34:35], s[28:29], 0")
        A("v_lshrrev_b32 v19, 3, v0\nv_mul_u32_u24 v4, 9216, v19\nv_and_b32 v18, 7, v0\nv_lshl_add_u32 v4, v18, 4, v4")
        A(f"s_mul_hi_u32 s66, s2, {(2**32+71)//72}\ns_mul_i32 s70, s66, 72\ns_sub_u32 s70, s2, s70\ns_min_u32 s66, s66, 2")
        A(f"s_lshl_b32 s70, s70, 7\ns_mul_i32 s71, s66, {192*9216}\ns_add_u32 s67, s70, s71")
        A(f"s_mul_i32 s70, s30, {3*8*9216}\ns_add_u32 s67, s67, s70")
        self.srd(48, 16, 0)
        A(f"s_cmp_lt_u32 s2, 216\ns_cselect_b32 s50, {576*4608*2}, 0")
        A(f"s_mul_i32 s66, s30, 3072\ns_add_u32 s66, s66, {W1B}")
        self.srd(36, 6, 268435456); self.srd(40, 8, 268435456)
        A(f"s_lshl_b32 s68, s31, 24\ns_lshl_b32 s70, s32, 16\ns_add_u32 s68, s68, s70\ns_add_u32 s68, s68, {61440*256}")
        if self.rb is None:
            A(f"s_mul_i32 s69, s2, {self.rot}\ns_add_u32 s69, s69, s30\ns_lshl_b32 s69, s69, 10")
        else:
            A(f"s_mul_i32 s69, s31, {self.rot}\ns_mul_i32 s70, s32, {self.rb}\ns_add_u32 s69, s69, s70\ns_add_u32 s69, s69, s30\ns_lshl_b32 s69, s69, 10")
        A(f"s_lshl_b32 s78, s30, 10\ns_add_u32 s78, s78, {KB}")
        A("s_and_b32 s70, s30, 3\ns_lshl_b32 s70, s70, 2\nv_lshrrev_b32 v19, 4, v0\nv_and_b32 v18, 15, v0")
        A("v_add_u32 v17, s70, v19\nv_xor_b32 v17, v17, v18\nv_lshlrev_b32 v17, 4, v17\nv_lshl_add_u32 v6, v19, 8, v17")
        def ld_w1(j):
            def f():
                A(f"s_add_u32 s70, s67, {j*8*9216}\ns_add_u32 s71, s66, {j*1024}")
                self.dma("v4", 48, "s70", "s71", "w1")
            return f
        def kvoff(j): A(f"s_add_u32 s70, s69, {j*8192}\ns_and_b32 s70, s70, 0xffff\ns_add_u32 s70, s70, s68")
        def ld_k(j):
            def f():
                kvoff(j); A(f"s_add_u32 s71, s78, {j*8192}")
                self.dma("v6", 36, "s70", "s71", "k")
            return f
        def ld_v(j):
            def f():
                kvoff(j); A(f"buffer_load_dwordx4 v[{44+4*j}:{47+4*j}], v2, s[40:43], s70 offen nt")
            return f
        T = lambda k, t: (lambda: self.ld_term(k, t))
        if self.kfirst:
            loads = [None, None] + [ld_k(j) for j in range(8)] + [ld_w1(j) for j in range(3)] + [ld_v(j) for j in range(8)] \
                  + [T("w2",0), T("w2",1), T("wo",0), T("wo",1)]
            iW1, iK = 12, 9
        else:
            loads = [None, None] + [ld_w1(j) for j in range(3)] + [ld_k(j) for j in range(8)] + [ld_v(j) for j in range(8)] \
                  + [T("w2",0), T("w2",1), T("wo",0), T("wo",1)]
            iW1, iK = 4, 12
        N = len(loads); issued = 2
        if self.early23 or self.lateb:
            while issued < D: loads[issued](); issued += 1
        if not self.lateb:
            A("s_barrier")
            self.stamp("s", 3)
        while issued < D: loads[issued](); issued += 1
        self.term_setup()
        self.masks_w()
        A("v_and_b32 v17, 1, v0\nv_lshlrev_b32 v17, 4, v17\nv_mov_b32 v18, 0xffff\nv_lshlrev_b32 v18, v17, v18\nv_bfe_u32 v17, v0, 1, 2")
        for j in range(4):
            A(f"v_cmp_eq_u32 vcc, {j}, v17\ns_nop 1\nv_cndmask_b32 v{116+j}, 0, v18, vcc")
        A(f"v_bfe_u32 v17, v0, 3, 1\nv_lshlrev_b32 v17, 10, v17\nv_lshrrev_b32 v18, 4, v0\nv_lshl_add_u32 v16, v18, 2, v17\ns_lshl_b32 s70, s30, 4\ns_add_u32 s70, s70, {PBUF}\nv_add_u32 v16, s70, v16")
        PV0 = self.PV0
        for i in range(0, 21):
            A(f"s_waitcnt vmcnt({issued - 1 - i})")
            if i in (self.IA, self.FB1, self.IB, 17):
                sk = self.lab("prog")
                A(f"s_cmp_lg_u32 s30, 0\ns_cbranch_scc1 {sk}")
                self.lds_setv(F_PROG, i)
                A(f"{sk}:")
            if self.so and i in (1, 4, 8, 16): self.stamp("s", {1:10, 4:11, 8:12, 16:13}[i])
            if i == 1 and not self.lateb: self.lds_inc(CNT_WQ)
            if i == iW1: self.lds_inc(CNT_W1)
            if i == iK:
                self.lds_inc(CNT_K); self.stamp("s", 2)
            if i == 20:
                self.stamp("s", 5)
                A(f"v_mfma_f32_16x16x32_bf16 v[120:123], v[{76+28}:{79+28}], v[{44+28}:{47+28}], v[120:123]")
                A("s_lshl_b32 s70, s30, 10\nv_lshl_add_u32 v17, v0, 4, s70\ns_nop 5")
                A(f"ds_write_b128 v17, v[120:123] offset:{ACCO}")
                self.lds_inc(CNT_O)
                if not self.so: self.stamp("s", 6)
                while issued < N: loads[issued](); issued += 1
                break
            tgt = min(N, i + 1 + D + (self.EX if i == self.PV0 else 0) + (1 if (self.DI and i >= self.DI) else 0))
            while issued < tgt:
                loads[issued](); issued += 1
            if i == 1 and self.lateb:
                A("s_barrier")
                self.stamp("s", 3)
                self.lds_inc(CNT_WQ)
            if i == PV0:
                if self.fuse & 8 and not self.so:
                    self.spin_with(CNT_P, 4, [f"ds_read_b32 v{108+t}, v16 offset:{128*t}" for t in range(8)])
                    self.tagfix()
                else:
                    self.spin(CNT_P, 4)
                    self.tagfix()
                    for t in range(8): A(f"ds_read_b32 v{108+t}, v16 offset:{128*t}")
                    A("s_waitcnt lgkmcnt(0)")
                for t in range(8):
                    for j in range(4): A(f"v_and_b32 v{76+4*t+j}, v{116+j}, v{108+t}")
                A("s_nop 1")
                for t in range(0, i - 13 + 1):
                    c = "0" if t == 0 else "v[120:123]"
                    A(f"v_mfma_f32_16x16x32_bf16 v[120:123], v[{76+4*t}:{79+4*t}], v[{44+4*t}:{47+4*t}], {c}")
                if not self.so: self.stamp("s", 4)
            if PV0 < i <= 19:
                t = i - 13
                A(f"v_mfma_f32_16x16x32_bf16 v[120:123], v[{76+4*t}:{79+4*t}], v[{44+4*t}:{47+4*t}], v[120:123]")
        A("L_term:")
        A("s_cmp_lt_u32 s2, 216\ns_cbranch_scc1 L_term_a\ns_cmp_ge_u32 s2, 252\ns_cbranch_scc1 L_term_a")
        self.ld_term("w2", 2); self.ld_term("w2", 3)
        A("s_branch L_term_b\nL_term_a:")
        for r in range(36, 44): A(f"v_mov_b32 v{r}, 0")
        A("L_term_b:")
        if self.fuse & 8 and not self.so:
            self.spin_with(F_H, 1, [f"ds_read_b32 v{112+t}, v15 offset:{HBUF + 32*t}" for t in range(4)])
        else:
            self.spin(F_H, 1)
            for t in range(4): A(f"ds_read_b32 v{112+t}, v15 offset:{HBUF + 32*t}")
            A("s_waitcnt lgkmcnt(0)")
        for t in range(4):
            for j in range(4): A(f"v_and_b32 v{76+4*t+j}, v{10+j}, v{112+t}")
        A("s_waitcnt vmcnt(0)")
        self.lds_inc(CNT_E)
        self.stamp("s", 34)
        A("v_mfma_f32_16x16x32_bf16 v[124:127], v[76:79], v[20:23], 0")
        A("v_mfma_f32_16x16x32_bf16 v[124:127], v[80:83], v[24:27], v[124:127]")
        A("v_mfma_f32_16x16x32_bf16 v[124:127], v[84:87], v[36:39], v[124:127]")
        A("v_mfma_f32_16x16x32_bf16 v[124:127], v[88:91], v[40:43], v[124:127]")
        A("v_mov_b32 v110, s34\nv_mov_b32 v111, s35")
        if self.fuse & 1 and not self.so:
            self.spin_with(F_O, 1, [f"ds_read_b32 v112, v15 offset:{OBUF}", f"ds_read_b32 v113, v15 offset:{OBUF+32}"])
            self.stamp("s", 8)
        else:
            self.spin(F_O, 1, sleep=self.fast)
            if not self.so: self.stamp("s", 8)
            A(f"ds_read_b32 v112, v15 offset:{OBUF}\nds_read_b32 v113, v15 offset:{OBUF+32}\ns_waitcnt lgkmcnt(0)")
        for n in range(2):
            for j in range(4): A(f"v_and_b32 v{92+4*n+j}, v{10+j}, v{112+n}")
        A("s_nop 1")
        A("v_mfma_f32_16x16x32_bf16 v[124:127], v[92:95], v[28:31], v[124:127]")
        A("v_mfma_f32_16x16x32_bf16 v[124:127], v[96:99], v[32:35], v[124:127]")
        self.extract_E(124, "v108", "v109")
        self.exec_n8()
        if not self.so: A("global_store_dwordx4 v14, v[108:111], s[74:75] sc1")
        if not self.so: self.stamp("s", 9)
        A("s_cmp_ge_u32 s2, 72\ns_cbranch_scc1 L_term_end")
        if self.so:
            pass
        elif self.mw3:
            A("s_cmp_ge_u32 s30, 8\ns_cbranch_scc1 L_term_end")
            A("s_mov_b64 exec, -1")
            A(f"s_lshl_b32 s70, s2, 14\ns_lshl_b32 s71, s30, 11\ns_add_u32 s70, s70, s71\ns_add_u32 s70, s70, {WS_X3}\ns_add_u32 s74, s28, s70\ns_addc_u32 s75, s29, 0")
            A(f"v_and_b32 v17, 3, v0\nv_lshlrev_b32 v17, 6, v17\ns_lshl_b32 s71, s30, 3\nv_add_u32 v17, s71, v17")
            if self.slp3 > 0: A(f"s_sleep {self.slp3}")
            else: A("s_waitcnt vmcnt(0)")
            if self.slp3 < 0: A(f"s_sleep {-self.slp3}")
            r = self.gather_begin("x3")
            A("global_load_dwordx4 v[20:23], v2, s[74:75] sc1\nglobal_load_dwordx4 v[24:27], v2, s[74:75] offset:1024 sc1\ns_waitcnt vmcnt(0)")
            self.gather_check([22, 26], r, backoff=self.bo3)
            A("v_add_f32 v20, v20, v24\nv_add_f32 v21, v21, v25\ns_nop 0")
            self.allreduce2("v_add_f32", "v20", "v21", "v22", "v23", (4, 8))
            A(f"s_mov_b64 exec, 0xf\nds_write_b64 v17, v[20:21] offset:{RED}")
            self.lds_inc(CNT_T)
        else:
            A("s_waitcnt vmcnt(0)")
            self.lds_inc(CNT_T)
        A("L_term_end:")
        self.flush_stamps("s", only=0)
        if not self.so: self.flush_stamps("s", only=8, remap={34:38, 9:39})
        self.flush_stamps("s", only=7, remap={0:21, 2:23, 4:25, 5:26, 6:27, 34:35, 8:29, 9:30, 10:14, 11:15, 12:16, 13:17} if self.so else {0:21, 2:23, 4:25, 5:26, 6:27, 34:35, 8:29, 9:30})
        A("s_endpgm")

    def stage1(self, ldsbase_sreg, xrow_sreg, acc, cnt):
        A = self.A
        A(f"v_add_u32 v16, {ldsbase_sreg}, v2\nv_add_u32 v17, {xrow_sreg}, v15")
        for n in range(6):
            A(f"ds_read_b32 v{68+n}, v17 offset:{XBUF + 32*n}")
        for n in range(6):
            A(f"ds_read_b128 v[{20+4*n}:{23+4*n}], v16 offset:{1024*n}")
        A("s_waitcnt lgkmcnt(6)")
        for n in range(6):
            for j in range(4): A(f"v_and_b32 v{44+4*n+j}, v{10+j}, v{68+n}")
        A("s_waitcnt lgkmcnt(0)")
        for n in range(6):
            c = "0" if n == 0 else "v[76:79]"
            A(f"v_mfma_f32_16x16x32_bf16 v[76:79], v[{44+4*n}:{47+4*n}], v[{20+4*n}:{23+4*n}], {c}")
        A("s_lshl_b32 s71, s71, 8\nv_add_u32 v17, s71, v14")
        self.extract_E(76, "v80", "v81")
        self.exec_n8()
        A(f"ds_write_b64 v17, v[80:81] offset:{acc}")
        self.lds_inc(cnt)

    def xwave(self):
        A = self.A; self.vt = "v9"
        A("L_x:")
        A("s_sub_u32 s30, s30, 10")
        A("v_lshlrev_b32 v2, 4, v0")
        self.wq_setup(None)
        A("s_waitcnt lgkmcnt(0)")
        A("s_load_dwordx2 s[34:35], s[28:29], 0")
        A("s_cmp_lg_u32 s30, 0\ns_cbranch_scc1 L_x_nold")
        self.srd(44, 10, 576*4096*2)
        A(f"s_add_u32 s65, s65, {16*65536}\ns_mov_b32 s66, {WQB + 16*1024}")
        self.dma("v3", 44, "s65", "s66")
        A(f"s_add_u32 s70, s65, 65536\ns_mov_b32 s66, {WQB + 17*1024}")
        self.dma("v3", 44, "s70", "s66")
        A("L_x_nold:")
        if self.touch:
            sk = self.lab("notouch")
            A(f"s_cmp_lg_u32 s30, 3\ns_cbranch_scc1 {sk}")
            A(f"s_lshl_b32 s70, s31, 24\ns_lshl_b32 s71, s32, 16\ns_add_u32 s70, s70, s71\ns_add_u32 s70, s70, {61440*256}")
            A("s_add_u32 s48, s8, s70\ns_addc_u32 s49, s9, 0\ns_load_dword s56, s[48:49], 0")
            if self.touch > 1:
                A("s_add_u32 s48, s6, s70\ns_addc_u32 s49, s7, 0\ns_load_dword s62, s[48:49], 0")
            A("s_lshl_b32 s70, s31, 4\ns_add_u32 s70, s70, s32\ns_mul_i32 s70, s70, %d\ns_add_u32 s48, s12, s70\ns_addc_u32 s49, s13, 0\ns_load_dword s57, s[48:49], 0" % (16*1152))
            A("s_lshl_b32 s70, s2, 4\ns_lshl_b32 s71, s2, 5\ns_sub_u32 s71, s71, %d\ns_cmp_lt_u32 s2, 216\ns_cselect_b32 s70, s70, s71\ns_min_u32 s70, s70, 4600" % (32*216 - 3456))
            A("s_mul_i32 s70, s70, 1152\ns_add_u32 s48, s20, s70\ns_addc_u32 s49, s21, 0\ns_load_dword s58, s[48:49], 0")
            A(f"s_load_dword s59, s[28:29], {WS_XH}")
            A(f"s_add_u32 s48, s28, {WS_X2}\ns_addc_u32 s49, s29, 0\ns_load_dword s60, s[48:49], 0")
            A(f"s_add_u32 s48, s28, {WS_ALT}\ns_addc_u32 s49, s29, 0\ns_load_dword s61, s[48:49], 0")
            A(f"{sk}:")
        A("s_barrier")
        if self.so: A("s_endpgm")
        self.masks_w()
        A("v_and_b32 v19, 7, v0\nv_lshlrev_b32 v14, 5, v19\nv_lshrrev_b32 v18, 4, v0\nv_lshl_add_u32 v14, v18, 3, v14")
        A("s_cmp_lg_u32 s30, 0\ns_cbranch_scc1 L_x_q")
        A("s_waitcnt vmcnt(0)")
        self.lds_inc(CNT_WQ)
        A("s_branch L_x_h")
        A("L_x_q:")
        A(f"s_sub_u32 s71, s30, 1\ns_mul_i32 s66, s71, 6144\ns_add_u32 s66, s66, {WQB}")
        A("s_mul_i32 s67, s64, 576\ns_mul_i32 s70, s71, 192\ns_add_u32 s67, s67, s70")
        self.spin(F_X, 1)
        self.spin(CNT_WQ, 9)
        self.stage1("s66", "s67", ACCQ, CNT_Q)
        self.stamp("x", 22)
        A("L_x_h:")
        A("s_cmp_ge_u32 s2, 216\ns_cbranch_scc1 L_x_qk")
        A(f"s_mul_i32 s66, s30, 6144\ns_add_u32 s66, s66, {W1B}")
        A(f"s_mul_hi_u32 s67, s2, {(2**32+71)//72}\ns_mul_i32 s67, s67, 768\ns_mul_i32 s70, s30, 192\ns_add_u32 s67, s67, s70")
        self.spin(F_X, 1)
        self.spin(CNT_W1, 8)
        A("s_mov_b32 s71, s30")
        self.stage1("s66", "s67", ACCH, CNT_H)
        A("L_x_qk:")
        A("v_and_b32 v18, 15, v0\nv_lshrrev_b32 v19, 4, v0")
        A(f"v_lshlrev_b32 v17, 4, v19\nv_lshl_add_u32 v4, v18, 5, v17\nv_add_u32 v4, {QBUF}, v4\nv_mov_b32 v5, {ZERO}")
        A("v_and_b32 v3, 7, v18\nv_cmp_eq_u32 vcc, 0, v3\ns_nop 1\nv_cndmask_b32 v3, v5, v4, vcc")
        A("v_subrev_u32 v4, 128, v4\nv_and_b32 v17, 7, v18\nv_cmp_eq_u32 vcc, 4, v17\ns_nop 1\nv_cndmask_b32 v4, v5, v4, vcc")
        A(f"s_lshl_b32 s71, s30, 14\ns_add_u32 s71, s71, {KB}\nv_lshl_add_u32 v5, v18, 8, s71")
        for j in range(4):
            A(f"v_add_u32 v17, {4*j}, v19\nv_xor_b32 v17, v17, v18\nv_lshl_add_u32 v{68+j}, v17, 4, v5")
        A(f"v_lshrrev_b32 v7, 5, v0\nv_lshlrev_b32 v6, 10, v7\nv_lshlrev_b32 v7, 2, v7\nv_and_b32 v17, 31, v0\nv_lshl_add_u32 v6, v17, 2, v6")
        A(f"s_lshl_b32 s71, s30, 8\ns_add_u32 s71, s71, {PBUF}\nv_add_u32 v6, s71, v6")
        A("v_mov_b32 v124, v68\nv_mov_b32 v125, v69\nv_mov_b32 v126, v70\nv_mov_b32 v127, v71")
        self.spin(CNT_K, 8)
        for T in range(4):
            for j in range(4):
                r = 52 + 16*T + 4*j
                A(f"ds_read_b128 v[{r}:{r+3}], v{124+j} offset:{4096*T}")
        self.spin(F_Q, 1)
        self.tagfix()
        for j in range(4): A(f"ds_read_b128 v[{20+4*j}:{23+4*j}], v3 offset:{64*j}")
        for j in range(4): A(f"ds_read_b128 v[{36+4*j}:{39+4*j}], v4 offset:{64*j}")
        A("s_waitcnt lgkmcnt(0)")
        for ch in range(2):
            Dr = 116 + 4*ch
            for j in range(4):
                c = "0" if j == 0 else f"v[{Dr}:{Dr+3}]"
                r = 52 + 32*ch + 4*j
                A(f"v_mfma_f32_16x16x32_bf16 v[{Dr}:{Dr+3}], v[{20+4*j}:{23+4*j}], v[{r}:{r+3}], {c}")
            for j in range(4):
                r = 52 + 32*ch + 16 + 4*j
                A(f"v_mfma_f32_16x16x32_bf16 v[{Dr}:{Dr+3}], v[{36+4*j}:{39+4*j}], v[{r}:{r+3}], v[{Dr}:{Dr+3}]")
        A("s_nop 7")
        for v in ("v116", "v120"):
            self.rnd(v, v); A(f"v_mul_f32 {v}, {SCALE:#x}, {v}"); self.rnd(v, v)
        A("v_max_f32 v117, v116, v120")
        self.allreduce("v_max_f32", "v117", "v118", s32=False)
        A("s_mov_b32 exec_lo, 1\ns_mov_b32 exec_hi, 1")
        A(f"ds_max_f32 v7, v117 offset:{MX}")
        self.lds_inc(CNT_M)
        l = self.lab("mspin"); d = self.lab("mdone")
        A(f"s_mov_b32 s81, 0\n{l}:\nds_read_b32 v9, v1 offset:{CNT_M}\nds_read_b32 v117, v7 offset:{MX}\ns_waitcnt lgkmcnt(0)\nv_readfirstlane_b32 s80, v9\ns_cmp_ge_u32 s80, 4\ns_cbranch_scc1 {d}")
        A(f"s_add_u32 s81, s81, 1\ns_cmp_lt_u32 s81, {SPIN_LIMIT}\ns_cbranch_scc1 {l}\ns_endpgm\n{d}:")
        A(f"v_sub_f32 v116, v116, v117\nv_sub_f32 v120, v120, v117\nv_mul_f32 v116, {LOG2E:#x}, v116\nv_mul_f32 v120, {LOG2E:#x}, v120")
        A("v_exp_f32 v116, v116\nv_exp_f32 v120, v120\ns_nop 0")
        A("v_cvt_pk_bf16_f32 v118, v116, v116\nv_cvt_pk_bf16_f32 v119, v120, v120\nv_add_f32 v116, v116, v120")
        A("ds_write_b32 v6, v118\nds_write_b32 v6, v119 offset:128")
        self.lds_inc(CNT_P)
        self.allreduce("v_add_f32", "v116", "v117", s32=False)
        A("s_mov_b32 exec_lo, 1\ns_mov_b32 exec_hi, 1")
        A(f"s_lshl_b32 s70, s30, 2\nv_lshl_add_u32 v17, v7, 2, s70\nds_write_b32 v17, v116 offset:{LW}")
        self.lds_inc(CNT_L)
        self.stamp("x", 24)
        A("s_cmp_eq_u32 s30, 0\ns_cbranch_scc1 L_t8")
        A("L_x_end:")
        self.flush_stamps("x", only=1)
        A("s_endpgm")
        A("L_t8:")
        A("s_mov_b32 s30, 8")
        self.term_setup()
        self.spin(F_PROG, 17)
        for k, t in (("w2",0), ("w2",1), ("wo",0), ("wo",1)): self.ld_term(k, t)
        A("s_branch L_term")

    def c1(self):
        A = self.A; self.vt = "v19"
        A("L_c1:")
        if self.diag and not self.mini: A("s_mov_b32 s68, s82\ns_mov_b32 s69, s83")
        if self.prio: A("s_setprio 3")
        A("v_lshlrev_b32 v2, 2, v0")
        A("s_waitcnt lgkmcnt(0)")
        self.srd(36, 4, 1152)
        for k in range(5): A(f"buffer_load_dword v{10+k}, v2, s[36:39], 0 offen offset:{256*k}")
        A("s_load_dwordx2 s[34:35], s[28:29], 0")
        if not self.lateb or self.so: A("s_barrier")
        if self.so: A("s_endpgm")
        A("s_waitcnt vmcnt(0)")
        for k in range(5):
            A(f"v_lshlrev_b32 v{20+2*k}, 16, v{10+k}\nv_and_b32 v{21+2*k}, 0xffff0000, v{10+k}")
        self.tree_sum([20,21,22,23,24,25,26,27,28,29][:0] or [], 1)
        A("v_add_f32 v30, v20, v21\nv_add_f32 v31, v22, v23\nv_add_f32 v42, v24, v25\nv_add_f32 v43, v26, v27\nv_add_f32 v44, v28, v29")
        A("v_add_f32 v30, v30, v31\nv_add_f32 v42, v42, v43\nv_add_f32 v30, v30, v44\nv_add_f32 v30, v30, v42")
        self.allreduce("v_add_f32", "v30", "v31")
        A(f"v_mul_f32 v30, {INV576:#x}, v30")
        A("v_cmp_gt_u32 vcc, 32, v0")
        for k in range(10): A(f"v_sub_f32 v{32+k}, v{20+k}, v30")
        A("v_cndmask_b32 v40, 0, v40, vcc\nv_cndmask_b32 v41, 0, v41, vcc")
        A("v_mul_f32 v31, v32, v32\nv_mul_f32 v42, v33, v33")
        for k in range(34, 42, 2): A(f"v_fmac_f32 v31, v{k}, v{k}\nv_fmac_f32 v42, v{k+1}, v{k+1}")
        A("v_add_f32 v31, v31, v42")
        self.allreduce("v_add_f32", "v31", "v42")
        A(f"v_mul_f32 v31, {INV576:#x}, v31")
        self.rnd("v30", "v30"); self.rnd("v31", "v31")
        A(f"v_add_f32 v31, {EPS:#x}, v31"); self.rnd("v31", "v31")
        A("v_sqrt_f32 v31, v31\ns_nop 0"); self.rnd("v31", "v31")
        A("v_rcp_f32 v31, v31")
        for k in range(10): A(f"v_sub_f32 v{32+k}, v{20+k}, v30")
        for k in range(10): A(f"v_cvt_pk_bf16_f32 v{32+k}, v{32+k}, v{32+k}")
        for k in range(10): A(f"v_and_b32 v{32+k}, 0xffff0000, v{32+k}")
        for k in range(10): A(f"v_mul_f32 v{32+k}, v{32+k}, v31")
        for k in range(10): A(f"v_cvt_pk_bf16_f32 v{32+k}, v{32+k}, v{32+k}")
        A("v_lshlrev_b32 v3, 3, v0")
        for k in range(4): A(f"ds_write_b64 v3, v[{32+2*k}:{33+2*k}] offset:{XBUF + 512*k}")
        A(f"s_mov_b32 exec_hi, 0\nds_write_b64 v3, v[40:41] offset:{XBUF + 2048}\ns_mov_b64 exec, -1")
        if self.lateb: A("s_barrier")
        self.lds_inc(F_X)
        A("s_waitcnt lgkmcnt(0)")
        self.tagfix()
        self.stamp("c1", 10)
        A(f"s_lshl_b32 s70, s31, 13\ns_add_u32 s70, s70, {WS_X1}\ns_add_u32 s40, s28, s70\ns_addc_u32 s41, s29, 0")
        A("s_lshl_b32 s70, s64, 11\ns_lshl_b32 s71, s33, 9\ns_add_u32 s70, s70, s71")
        A("v_lshlrev_b32 v4, 4, v0\nv_add_u32 v5, s70, v4")
        A("v_mov_b32 v46, s34\nv_mov_b32 v47, s35")
        A("s_getreg_b32 s79, hwreg(HW_REG_XCC_ID, 0, 4)")
        A(f"s_mul_i32 s70, s31, {8192-256}\ns_sub_u32 s78, {WS_XI - WS_X1}, s70")
        A("v_and_b32 v6, 15, v0\nv_lshlrev_b32 v6, 4, v6\nv_add_u32 v6, s78, v6")
        A("s_lshl_b32 s70, s32, 4\ns_add_u32 s78, s78, s70")
        self.spin(CNT_Q, 3)
        for w in range(3): A(f"ds_read_b64 v[{48+2*w}:{49+2*w}], v3 offset:{ACCQ + 256*w}")
        A("s_waitcnt lgkmcnt(0)\nv_add_f32 v44, v48, v50\nv_add_f32 v45, v49, v51\nv_add_f32 v44, v44, v52\nv_add_f32 v45, v45, v53")
        A("s_mov_b32 exec_lo, 0\ns_mov_b32 exec_hi, 1\nv_mov_b32 v44, s79\nv_mov_b32 v45, 0\nv_mov_b32 v5, s78\ns_mov_b32 exec_lo, -1")
        if self.dual1:
            A(f"s_add_u32 s42, s40, {WS_ALT}\ns_addc_u32 s43, s41, 0")
            A("global_store_dwordx4 v5, v[44:47], s[42:43]")
        A("global_store_dwordx4 v5, v[44:47], s[40:41] sc1\ns_mov_b64 exec, -1")
        self.stamp("c1", 11)
        A("v_add_u32 v5, 4096, v4")
        self.spin(F_PROG, self.IA)
        self.hint(40, [512*p + 31*16 + 8 for p in range(16)], 48)
        self.stamp("c1", 36)
        if self.dual1: A("s_mov_b32 s48, s42\ns_mov_b32 s49, s43")
        else: A("s_mov_b32 s48, s40\ns_mov_b32 s49, s41")
        r = self.gather_begin("x1")
        for rg in range(4):
            for h in range(2):
                off = rg*2048 + h*1024; reg = 48 + 4*(2*rg + h)
                A(f"global_load_dwordx4 v[{reg}:{reg+3}], {'v4' if off < 4096 else 'v5'}, s[48:49] offset:{off % 4096} sc1")
        A("global_load_dwordx4 v[80:83], v6, s[48:49] sc1")
        A("s_waitcnt vmcnt(0)")
        for n, rr in enumerate([48 + 4*i + 2 for i in range(8)] + [82]):
            if n == 0: A(f"v_cmp_ne_u64 s[76:77], s[34:35], v[{rr}:{rr+1}]")
            else: A(f"v_cmp_ne_u64 vcc, s[34:35], v[{rr}:{rr+1}]\ns_or_b64 s[76:77], s[76:77], vcc")
        ok = self.lab("x1ok"); nofb = self.lab("x1nofb")
        if 'chk' not in self.off:
            A(f"s_cmp_eq_u64 s[76:77], 0\ns_cbranch_scc1 {ok}")
            if self.dual1:
                A(f"ds_read_b32 v19, v1 offset:{F_PROG}\ns_waitcnt lgkmcnt(0)\nv_readfirstlane_b32 s80, v19\ns_cmp_lt_u32 s80, {self.FB1}\ns_cbranch_scc1 {nofb}")
                A(f"s_mov_b32 s48, s40\ns_mov_b32 s49, s41\n{nofb}:")
            A(f"s_add_u32 s81, s81, 1\ns_cmp_lt_u32 s81, {POLL_LIMIT}\ns_cbranch_scc1 {r}\ns_endpgm\n{ok}:")
        if self.diag and not self.mini:
            lst = self.stamps.setdefault("c1", []); j = len(lst); lst.append(37)
            A(f"s_mul_i32 s70, s81, 100\ns_cmp_eq_u32 s48, s40\ns_cselect_b32 s71, 5000, 0\ns_add_u32 s70, s70, s71\ns_add_u32 s{82+2*j}, s68, s70\ns_addc_u32 s{83+2*j}, s69, 0")
        A("v_readfirstlane_b32 s70, v80\ns_nop 1\nv_cmp_ne_u32 vcc, s70, v80\ns_cmp_eq_u64 vcc, 0\ns_cselect_b32 s79, %d, 0" % (1 if self.fastx2 else 0))
        for h in range(2):
            for e in range(2):
                b = 48 + 4*h + e
                A(f"v_add_f32 v{b}, v{b}, v{b+8}\nv_add_f32 v{b+16}, v{b+16}, v{b+24}\nv_add_f32 v{b}, v{b}, v{b+16}")
        A("v_cvt_pk_bf16_f32 v48, v48, v49\nv_cvt_pk_bf16_f32 v52, v52, v53")
        A(f"ds_write_b32 v2, v48 offset:{QBUF}\nds_write_b32 v2, v52 offset:{QBUF+256}")
        self.lds_inc(F_Q)
        self.stamp("c1", 12)
        A(f"s_lshl_b32 s70, s31, 16\ns_add_u32 s70, s70, {WS_X2}\ns_add_u32 s44, s28, s70\ns_addc_u32 s45, s29, 0")
        A("v_lshrrev_b32 v7, 5, v0\nv_lshlrev_b32 v7, 15, v7\nv_bfe_u32 v6, v0, 1, 3\nv_lshl_add_u32 v7, v6, 12, v7")
        A("v_and_b32 v6, 1, v0\nv_lshl_add_u32 v7, v6, 6, v7\nv_bfe_u32 v6, v0, 4, 1\nv_lshl_add_u32 v7, v6, 5, v7")
        A("s_lshl_b32 s70, s32, 7\nv_add_u32 v7, s70, v7")
        A("v_and_b32 v6, 15, v0\nv_lshlrev_b32 v9, 12, v6\ns_lshl_b32 s70, s32, 4\ns_add_u32 s70, s70, 2048\nv_add_u32 v9, s70, v9")
        A("v_lshrrev_b32 v6, 3, v6\nv_lshlrev_b32 v10, 2, v6\nv_lshlrev_b32 v11, 4, v6")
        A("v_mov_b32 v50, s34\nv_mov_b32 v51, s35\nv_mov_b32 v54, s34\nv_mov_b32 v55, s35\nv_mov_b32 v58, s34\nv_mov_b32 v59, s35")
        A("s_lshl_b32 s70, s32, 12\ns_add_u32 s46, s44, s70\ns_addc_u32 s47, s45, 0")
        A("v_lshrrev_b32 v8, 3, v0\nv_lshlrev_b32 v8, 4, v8\nv_add_u32 v8, 2048, v8")
        self.spin(CNT_L, 4)
        A(f"ds_read_b32 v56, v10 offset:{MX}\nds_read_b128 v[60:63], v11 offset:{LW}\ns_waitcnt lgkmcnt(0)")
        A("v_add_f32 v60, v60, v61\nv_add_f32 v62, v62, v63\nv_add_f32 v57, v60, v62")
        if self.fuse & 2:
            self.spin_with(CNT_O, 8, [f"ds_read_b128 v[{76+4*w}:{79+4*w}], v4 offset:{ACCO + 1024*w}" for w in range(8)])
            self.stamp("c1", 31)
        else:
            self.spin(CNT_O, 8, sleep=self.fast)
            self.stamp("c1", 31)
            for w in range(8): A(f"ds_read_b128 v[{76+4*w}:{79+4*w}], v4 offset:{ACCO + 1024*w}")
            A("s_waitcnt lgkmcnt(0)")
        for a_, b_ in ((76, 80), (84, 88), (92, 96), (100, 104)):
            A(f"v_pk_add_f32 v[{a_}:{a_+1}], v[{a_}:{a_+1}], v[{b_}:{b_+1}]\nv_pk_add_f32 v[{a_+2}:{a_+3}], v[{a_+2}:{a_+3}], v[{b_+2}:{b_+3}]")
        for a_, b_ in ((76, 84), (92, 100)):
            A(f"v_pk_add_f32 v[{a_}:{a_+1}], v[{a_}:{a_+1}], v[{b_}:{b_+1}]\nv_pk_add_f32 v[{a_+2}:{a_+3}], v[{a_+2}:{a_+3}], v[{b_+2}:{b_+3}]")
        A("v_pk_add_f32 v[48:49], v[76:77], v[92:93]\nv_pk_add_f32 v[52:53], v[78:79], v[94:95]")
        slow = self.lab("x2slow"); pub = self.lab("x2pub")
        A(f"s_cmp_eq_u32 s79, 0\ns_cbranch_scc1 {slow}")
        A("global_store_dwordx4 v7, v[48:51], s[44:45]\nglobal_store_dwordx4 v7, v[52:55], s[44:45] offset:16")
        A("s_mov_b64 exec, 0xffff\nglobal_store_dwordx4 v9, v[56:59], s[44:45]\ns_mov_b64 exec, -1")
        A(f"s_branch {pub}\n{slow}:")
        A("global_store_dwordx4 v7, v[48:51], s[44:45] sc1\nglobal_store_dwordx4 v7, v[52:55], s[44:45] offset:16 sc1")
        A("s_mov_b64 exec, 0xffff\nglobal_store_dwordx4 v9, v[56:59], s[44:45] sc1\ns_mov_b64 exec, -1")
        if self.KE: self.spin(CNT_E, self.KE, sleep=self.fast)
        A(f"{pub}:")
        self.stamp("c1", 14)
        def x2round(b):
            A(f"global_load_dwordx4 v[{b}:{b+3}], v4, s[46:47] sc1\nglobal_load_dwordx4 v[{b+4}:{b+7}], v4, s[46:47] offset:1024 sc1")
            A(f"global_load_dwordx4 v[{b+8}:{b+11}], v8, s[46:47] sc1\nglobal_load_dwordx4 v[{b+12}:{b+15}], v8, s[46:47] offset:128 sc1")
        def x2chk(b, ok):
            A(f"v_cmp_ne_u64 s[76:77], s[34:35], v[{b+2}:{b+3}]\nv_cmp_ne_u64 vcc, s[34:35], v[{b+6}:{b+7}]\ns_or_b64 s[76:77], s[76:77], vcc")
            A(f"v_cmp_ne_u64 vcc, s[34:35], v[{b+10}:{b+11}]\ns_or_b64 s[76:77], s[76:77], vcc\nv_cmp_ne_u64 vcc, s[34:35], v[{b+14}:{b+15}]\ns_or_b64 s[76:77], s[76:77], vcc")
            A(f"s_cmp_eq_u64 s[76:77], 0\ns_cbranch_scc1 {ok}")
        nr = self.nr2
        if nr == 2:
            r = self.lab("x2loop"); okA = self.lab("x2okA"); okB = self.lab("x2okB")
            A("s_mov_b32 s81, 0")
            x2round(60)
            A(f"{r}:")
            x2round(76)
            A("s_waitcnt vmcnt(4)")
            x2chk(60, okA)
            x2round(60)
            A("s_waitcnt vmcnt(4)")
            x2chk(76, okB)
            A(f"s_add_u32 s81, s81, 1\ns_cmp_lt_u32 s81, {POLL_LIMIT}\ns_cbranch_scc1 {r}\ns_endpgm")
            self.okB = okB
            A(f"{okA}:")
        else:
            r = self.gather_begin("x2")
            oks = [self.lab("x2ok") for _ in range(nr)]
            for k in range(nr):
                x2round(60 + 16*k)
                if k < nr - 1: A(f"s_sleep {self.slp2}")
            for k in range(nr):
                A(f"s_waitcnt vmcnt({4*(nr-1-k)})")
                x2chk(60 + 16*k, oks[k])
            A(f"s_add_u32 s81, s81, 1\ns_cmp_lt_u32 s81, {POLL_LIMIT}\ns_cbranch_scc1 {r}\ns_endpgm")
            for k in range(nr - 1, 0, -1):
                A(f"{oks[k]}:")
                for q in (0, 1, 4, 5, 8, 9, 12, 13): A(f"v_mov_b32 v{60+q}, v{60+16*k+q}")
                if k > 1: A(f"s_branch {oks[0]}")
            A(f"{oks[0]}:")
        def o_math(b):
            d0, d1, e0, e1, m0, l0, m1, l1, L = b, b+1, b+4, b+5, b+8, b+9, b+12, b+13, b+2
            A(f"v_max_f32 v56, v{m0}, v{m1}")
            self.allreduce("v_max_f32", "v56", "v57", rors=(8,))
            A(f"v_sub_f32 v{m0}, v{m0}, v56\nv_sub_f32 v{m1}, v{m1}, v56\nv_mul_f32 v{m0}, {LOG2E:#x}, v{m0}\nv_mul_f32 v{m1}, {LOG2E:#x}, v{m1}")
            A(f"v_exp_f32 v{m0}, v{m0}\nv_exp_f32 v{m1}, v{m1}\ns_nop 0")
            A(f"v_mul_f32 v{d0}, v{d0}, v{m0}\nv_mul_f32 v{d1}, v{d1}, v{m0}\nv_mul_f32 v{L}, v{l0}, v{m0}")
            A(f"v_fmac_f32 v{d0}, v{e0}, v{m1}\nv_fmac_f32 v{d1}, v{e1}, v{m1}\nv_fmac_f32 v{L}, v{l1}, v{m1}")
            A("s_nop 0")
            for v in (d0, d1, L): A(f"v_add_f32_dpp v{v}, v{v}, v{v} row_ror:8 row_mask:0xf bank_mask:0xf")
            for which in (16, 32):
                A(f"v_mov_b32 v56, v{d0}\nv_mov_b32 v57, v{d1}\nv_mov_b32 v58, v{L}")
                A(f"v_permlane{which}_swap_b32 v{d0}, v56\nv_permlane{which}_swap_b32 v{d1}, v57\nv_permlane{which}_swap_b32 v{L}, v58")
                A(f"v_add_f32 v{d0}, v{d0}, v56\nv_add_f32 v{d1}, v{d1}, v57\nv_add_f32 v{L}, v{L}, v58")
            A(f"v_rcp_f32 v{L}, v{L}\ns_nop 0\nv_mul_f32 v{d0}, v{d0}, v{L}\nv_mul_f32 v{d1}, v{d1}, v{L}")
            A(f"v_cvt_pk_bf16_f32 v{d0}, v{d0}, v{d0}\nv_cvt_pk_bf16_f32 v{d1}, v{d1}, v{d1}")
            A(f"s_mov_b64 exec, 0xff\nds_write_b64 v3, v[{d0}:{d1}] offset:{OBUF}\ns_mov_b64 exec, -1")
        self.stamp("c1", 33)
        o_math(60)
        if self.nr2 == 2:
            A(f"s_branch L_o_done\n{self.okB}:")
            o_math(76)
            A("L_o_done:")
        self.lds_inc(F_O)
        self.stamp("c1", 15)
        self.flush_stamps("c1")
        A("s_endpgm")

    def c2(self):
        A = self.A; self.vt = "v15"
        A("L_c2:")
        if self.prio: A("s_setprio 2")
        A("v_lshlrev_b32 v4, 4, v0\nv_mov_b32 v8, 0\nv_mov_b32 v9, 0\nv_mov_b32 v10, 0\nv_mov_b32 v11, 0")
        A(f"s_mov_b32 exec_hi, 0xffff\nds_write_b128 v4, v[8:11] offset:{ZERO}\ns_mov_b64 exec, -1")
        A(f"v_mov_b32 v8, 0xff800000\nv_mov_b32 v9, 0xff800000\ns_mov_b64 exec, 1\nds_write_b64 v1, v[8:9] offset:{MX}\ns_mov_b64 exec, -1")
        A("s_waitcnt lgkmcnt(0)")
        A("s_load_dwordx2 s[34:35], s[28:29], 0")
        A("s_barrier")
        if self.so: A("s_endpgm")
        A("s_lshl_b32 s72, s2, 4\ns_lshl_b32 s70, s2, 5\ns_sub_u32 s70, s70, %d" % (32*216 - 3456))
        A("s_cmp_lt_u32 s2, 216\ns_cselect_b32 s72, s72, s70\ns_cselect_b32 s73, 7, 15")
        A("v_and_b32 v5, s73, v0")
        self.srd(36, 18, 4608*2)
        A("s_lshl_b32 s70, s72, 1\nv_lshl_add_u32 v6, v5, 2, s70")
        A("buffer_load_dword v12, v6, s[36:39], 0 offen")
        self.srd(40, 4, 1152); self.srd(44, 22, 1152)
        A("v_and_b32 v7, 3, v0\nv_lshlrev_b32 v7, 2, v7\ns_lshl_b32 s70, s2, 4\nv_add_u32 v7, s70, v7")
        A("buffer_load_dword v13, v7, s[40:43], 0 offen\nbuffer_load_dword v14, v7, s[44:47], 0 offen")
        A("v_lshlrev_b32 v3, 3, v0")
        A("s_waitcnt lgkmcnt(0)")
        self.tagfix()
        A("v_mov_b32 v46, s34\nv_mov_b32 v47, s35")
        A(f"s_add_u32 s48, s28, {WS_XH}\ns_addc_u32 s49, s29, 0")
        A("s_cmp_ge_u32 s2, 216\ns_cbranch_scc1 L_c2_nopub")
        A(f"s_mul_hi_u32 s66, s2, {(2**32+71)//72}\ns_mul_i32 s70, s66, 72\ns_sub_u32 s70, s2, s70")
        A("s_mul_i32 s70, s70, 1536\ns_lshl_b32 s71, s66, 9\ns_add_u32 s70, s70, s71\nv_add_u32 v8, s70, v4")
        self.spin(CNT_H, 4)
        for w in range(4): A(f"ds_read_b64 v[{48+2*w}:{49+2*w}], v3 offset:{ACCH + 256*w}")
        A("s_waitcnt lgkmcnt(0)")
        self.tree_sum([48, 50, 52, 54], 2)
        A("v_mov_b32 v44, v48\nv_mov_b32 v45, v49\ns_mov_b32 exec_hi, 0")
        A("global_store_dwordx4 v8, v[44:47], s[48:49] sc1\ns_mov_b64 exec, -1")
        self.stamp("c2", 16)
        A("L_c2_nopub:")
        A("s_cmp_ge_u32 s2, 252\ns_cbranch_scc1 L_c2_hdone")
        A("s_lshr_b32 s70, s72, 6\ns_mul_i32 s70, s70, 1536\ns_and_b32 s71, s72, 63\ns_lshl_b32 s71, s71, 3\ns_add_u32 s70, s70, s71")
        A("v_lshl_add_u32 v8, v5, 4, s70")
        A("s_add_u32 s50, s48, s70\ns_addc_u32 s51, s49, 0")
        self.spin(F_PROG, self.IB)
        self.hint(50, [512*rg + 7*16 + 8 for rg in range(3)], 56)
        r = self.gather_begin("xh")
        for rg in range(3): A(f"global_load_dwordx4 v[{16+4*rg}:{19+4*rg}], v8, s[48:49] offset:{512*rg} sc1")
        A("s_waitcnt vmcnt(0)")
        self.gather_check([18, 22, 26], r)
        for e in range(2):
            A(f"v_add_f32 v{16+e}, v{16+e}, v{20+e}\nv_add_f32 v{16+e}, v{16+e}, v{24+e}")
            self.rnd(f"v{16+e}", f"v{16+e}")
        A("v_lshlrev_b32 v18, 16, v12\nv_and_b32 v19, 0xffff0000, v12")
        for e in range(2):
            A(f"v_add_f32 v{16+e}, v{16+e}, v{18+e}")
            self.rnd(f"v{16+e}", f"v{16+e}")
            A(f"v_cmp_gt_f32 vcc, v{16+e}, 0\ns_nop 1\nv_cndmask_b32 v{16+e}, 0, v{16+e}, vcc")
            A(f"v_mul_f32 v{16+e}, v{16+e}, v{16+e}\nv_cvt_pk_bf16_f32 v{16+e}, v{16+e}, v{16+e}")
        A("v_lshlrev_b32 v8, 3, v5")
        A(f"s_mov_b64 exec, 0xffff\nds_write_b64 v8, v[16:17] offset:{HBUF}\ns_mov_b64 exec, -1")
        A("L_c2_hdone:")
        self.lds_inc(F_H)
        self.stamp("c2", 17)
        A("s_cmp_ge_u32 s2, 72\ns_cbranch_scc1 L_c2_end")
        A(f"s_lshl_b32 s70, s2, 14\ns_add_u32 s70, s70, {WS_X3}\ns_add_u32 s50, s28, s70\ns_addc_u32 s51, s29, 0")
        A("v_add_u32 v5, 4096, v4\nv_add_u32 v6, 8192, v4\nv_add_u32 v8, 12288, v4")
        A("s_waitcnt vmcnt(0)")
        A("v_lshlrev_b32 v16, 16, v13\nv_and_b32 v17, 0xffff0000, v13\nv_lshlrev_b32 v18, 16, v14\nv_and_b32 v19, 0xffff0000, v14")
        A("v_add_f32 v16, v16, v18\nv_add_f32 v17, v17, v19")
        self.srd(52, 24, 1152)
        if self.mw3:
            A("v_and_b32 v5, 3, v0\nv_lshlrev_b32 v5, 6, v5")
            if self.fuse & 4:
                self.spin_with(CNT_T, 8, [f"ds_read_b128 v[{20+4*k}:{23+4*k}], v5 offset:{RED + 16*k}" for k in range(4)])
                self.stamp("c2", 19)
            else:
                self.spin(CNT_T, 8, sleep=self.fast)
                self.stamp("c2", 19)
                for k in range(4): A(f"ds_read_b128 v[{20+4*k}:{23+4*k}], v5 offset:{RED + 16*k}")
                A("s_waitcnt lgkmcnt(0)")
            self.tree_sum([20+2*k for k in range(8)], 2)
        else:
            self.spin(CNT_T, 9, sleep=self.fast)
            self.stamp("c2", 18)
            r = self.gather_begin("x3")
            bases = ["v4", "v5", "v6", "v8"]
            for i in range(16):
                A(f"global_load_dwordx4 v[{20+4*i}:{23+4*i}], {bases[i//4]}, s[50:51] offset:{(i%4)*1024} sc1")
            A("s_waitcnt vmcnt(0)")
            self.gather_check([20+4*i+2 for i in range(16)], r)
            self.stamp("c2", 19)
            self.tree_sum([20+4*i for i in range(16)], 2)
            A("s_nop 0")
            self.allreduce2("v_add_f32", "v20", "v21", "v22", "v23", (4, 8))
        A("v_add_f32 v20, v20, v16\nv_add_f32 v21, v21, v17\nv_cvt_pk_bf16_f32 v20, v20, v21")
        if self.until:
            A(f"s_add_u32 s78, s78, {self.until}\nL_until:\ns_memrealtime s[70:71]\ns_waitcnt lgkmcnt(0)\ns_cmp_lt_u32 s70, s78\ns_cbranch_scc1 L_until")
        if self.burn:
            A(f"s_mov_b32 s70, {self.burn}\nL_burn:\nv_add_f32 v30, v30, v30\nv_add_f32 v30, v30, v30\nv_add_f32 v30, v30, v30\nv_add_f32 v30, v30, v30\ns_sub_u32 s70, s70, 1\ns_cmp_lg_u32 s70, 0\ns_cbranch_scc1 L_burn")
        A("s_mov_b64 exec, 0xf\nbuffer_store_dword v20, v7, s[52:55], 0 offen")
        A("s_cmp_lg_u32 s2, 0\ns_cbranch_scc1 L_c2_noep")
        A("s_mov_b64 exec, 1\nglobal_store_dwordx2 v1, v[46:47], s[28:29] sc1")
        A("L_c2_noep:")
        self.stamp("c2", 20)
        A("L_c2_end:")
        self.flush_stamps("c2")
        A("s_endpgm")

if __name__ == "__main__":
    import argparse
    ap = argparse.ArgumentParser()
    ap.add_argument("--out", default="v2")
    ap.add_argument("--diag", action="store_true"); ap.add_argument("--dbg", action="store_true")
    ap.add_argument("--D", type=int, default=4); ap.add_argument("--rot", type=int, default=4)
    ap.add_argument("--gmap", default="low"); ap.add_argument("--PV0", type=int, default=18)
    ap.add_argument("--off", default="")
    ap.add_argument("--IA", type=int, default=10); ap.add_argument("--IB", type=int, default=14); ap.add_argument("--KE", type=int, default=1)
    ap.add_argument("--burn", type=int, default=0)
    ap.add_argument("--until", type=int, default=0)
    ap.add_argument("--fastx2", type=int, default=1); ap.add_argument("--early23", type=int, default=0); ap.add_argument("--hint3", type=int, default=0)
    ap.add_argument("--slp3", type=int, default=0)
    ap.add_argument("--mw3", type=int, default=1); ap.add_argument("--slp2", type=int, default=6); ap.add_argument("--nr2", type=int, default=1)
    ap.add_argument("--dual1", type=int, default=1); ap.add_argument("--FB1", type=int, default=12)
    ap.add_argument("--touch", type=int, default=0)
    ap.add_argument("--mini", type=int, default=0); ap.add_argument("--EX", type=int, default=0)
    ap.add_argument("--kfirst", type=int, default=0)
    ap.add_argument("--bo3", type=int, default=0)
    ap.add_argument("--lateb", type=int, default=0)
    ap.add_argument("--rb", type=int, default=None)
    ap.add_argument("--fuse", type=int, default=0)
    ap.add_argument("--DI", type=int, default=0)
    ap.add_argument("--so", type=int, default=0); ap.add_argument("--nodma", default="")
    ap.add_argument("--sleep", type=int, default=0); ap.add_argument("--spin1", type=int, default=0); ap.add_argument("--fast", type=int, default=0)
    ap.add_argument("--prio", type=int, default=1); ap.add_argument("--hints", type=int, default=0)
    a = ap.parse_args()
    g = G(diag=a.diag or a.mini, dbg=a.dbg, D=a.D, rot=a.rot, gmap=a.gmap, PV0=a.PV0, prio=a.prio, hints=a.hints, sleep=a.sleep, spin1=a.spin1, fast=a.fast, so=a.so, nodma=a.nodma, off=a.off, IA=a.IA, IB=a.IB, KE=a.KE, burn=a.burn, until=a.until, fastx2=a.fastx2, early23=a.early23, hint3=a.hint3, slp3=a.slp3, mw3=a.mw3, slp2=a.slp2, nr2=a.nr2, dual1=a.dual1, FB1=a.FB1, touch=a.touch, mini=a.mini, EX=a.EX, kfirst=a.kfirst, bo3=a.bo3, lateb=a.lateb, rb=a.rb, fuse=a.fuse, DI=a.DI)
    asm = g.gen()
    build(asm, a.out)
    print("built", a.out, len(asm), "bytes")
```
